```python
import torch

def _softmax(x, axis=-1):
    return torch.softmax(x, dim=axis)
def _gelu(x):
    return torch.nn.functional.gelu(x, approximate="tanh")
def _silu(x):
    return torch.nn.functional.silu(x)
def _sigmoid(x):
    return torch.sigmoid(x)
def _layernorm(x, axis=-1, eps=1e-5):
    m = x.mean(dim=axis, keepdim=True)
    v = x.var(dim=axis, keepdim=True, unbiased=False)
    return (x - m) / torch.sqrt(v + eps)
def _scatter_add(tgt, idx, src, axis=0):
    return tgt.clone().index_add_(axis, idx, src)
def _segment_sum(src, seg, n):
    out = torch.zeros((n,) + src.shape[1:], dtype=src.dtype)
    return out.index_add_(0, seg, src)
def _pad(x, pw):
    flat = tuple(v for pair in reversed(pw) for v in pair)
    return torch.nn.functional.pad(x, flat)

kernel_name = 'parallel_sum__spectral_gfnet__dense_activation_silu__prompt'

def setup_inputs():

    _w = (lambda a: (lambda t: t.to(torch.bfloat16) if t.is_floating_point() else t)(torch.as_tensor(a)))
    def _A_setup():
        B, S, D = 1, 2048, 576
        Df = D // 2 + 1
        return {
            "x": _w((lambda *s: torch.randn(*s, dtype=torch.bfloat16) * 0.05)(B, S, D)),
            "w_r": _w((lambda *s: torch.randn(*s, dtype=torch.bfloat16) * 0.8)(S, Df) * 0.02),
            "w_i": _w((lambda *s: torch.randn(*s, dtype=torch.bfloat16) * 0.8)(S, Df) * 0.02),
        }
    _A_in = _A_setup()

    def _B_setup():
        B, S, D, F = 1, 2048, 576, 4608
        return {
            "x": _w((lambda *s: torch.randn(*s, dtype=torch.bfloat16) * 0.05)(B, S, D)),
            "w1": _w((lambda *s: torch.randn(*s, dtype=torch.bfloat16) * 0.8)(D, F) * (D ** -0.5)),
            "w2": _w((lambda *s: torch.randn(*s, dtype=torch.bfloat16) * 0.1)(F, D) * (F ** -0.5)),
        }
    _B_in = _B_setup()

    return {
        "A_x": _A_in["x"],
        "A_w_r": _A_in["w_r"],
        "A_w_i": _A_in["w_i"],
        "B_x": _B_in["x"],
        "B_w1": _B_in["w1"],
        "B_w2": _B_in["w2"],
    }

def reference(A_x, A_w_r, A_w_i, B_x, B_w1, B_w2):
    def _A_ref(x, w_r, w_i):
        B, S, D = x.shape
        X = (lambda x, axes=(-2,-1): torch.fft.rfft2(x.float(), dim=axes))(x, axes=(-2, -1))
        W = w_r + 1j * w_i
        X = X * W
        y = (lambda x, s, axes=(-2,-1): torch.fft.irfft2(x, s=s, dim=axes).to(torch.bfloat16))(X, (S, D), axes=(-2, -1))
        return y

    def _B_ref(x, w1, w2):
        h = torch.einsum("bsd,df->bsf", x, w1)
        h = _silu(h)
        out = torch.einsum("bsf,fd->bsd", h, w2)
        return out

    x = A_x
    xn = _layernorm(x, axis=-1)
    return x + _A_ref(xn, A_w_r, A_w_i) + _B_ref(xn, B_w1, B_w2)
```

```python
import re

_REG = re.compile(r"^(-|\|)?([vas])(?:(\d+)|\[(\d+):(\d+)\])\|?$")

def regs_of(tok):
    tok = tok.strip()
    if tok in ("vcc", "vcc_lo"): return {("s", "vcc")}
    if tok == "exec": return {("s", "exec")}
    if tok == "m0": return {("s", "m0")}
    m = _REG.match(tok)
    if not m: return set()
    k = m.group(2)
    if m.group(3) is not None: return {(k, int(m.group(3)))}
    return {(k, i) for i in range(int(m.group(4)), int(m.group(5)) + 1)}

TRANS = ("v_exp_f32", "v_rcp_f32", "v_sqrt_f32", "v_rsq_f32", "v_cos_f32", "v_sin_f32", "v_log_f32")
NODEST = ("s_cmp", "s_cbranch", "s_branch", "s_waitcnt", "s_barrier", "s_nop", "s_endpgm", "s_sleep", "s_setprio", "s_bitcmp")

class I:
    __slots__ = ("t", "op", "kind", "rd", "wr", "tag", "blk", "ops", "arg")
    def __init__(self, t, tag=None, kind=None, arg=None):
        self.t = t; self.tag = tag; self.blk = None; self.arg = arg
        self.rd = set(); self.wr = set(); self.ops = []
        if kind is not None:
            self.kind = kind; self.op = kind; return
        parts = t.split(None, 1)
        op = self.op = parts[0]
        rest = parts[1] if len(parts) > 1 else ""
        toks = [x.strip() for x in rest.split(",")] if rest else []
        if toks:
            last = toks[-1].split()
            toks[-1] = last[0] if last else ""
            mods = last[1:]
        else:
            mods = []
        R = [regs_of(x) for x in toks]; self.ops = R
        allr = lambda l: set().union(*l) if l else set()
        if op.startswith("v_mfma"):
            self.kind = "M32" if "32x32" in op else "M16"
            self.wr = R[0]; self.rd = allr(R[1:])
        elif op.startswith("v_"):
            self.kind = "T" if op.startswith(TRANS) else "V"
            if "swap" in op: self.wr = R[0] | R[1]; self.rd = R[0] | R[1]
            elif op.startswith(("v_fmac", "v_dot2c")): self.wr = R[0]; self.rd = allr(R)
            elif "_co_" in op: self.wr = R[0] | R[1]; self.rd = allr(R[2:])
            else: self.wr = R[0]; self.rd = allr(R[1:])
        elif op.startswith("ds_read"):
            self.kind = "DR"; self.wr = R[0]; self.rd = allr(R[1:])
        elif op.startswith("ds_write"):
            self.kind = "DW"; self.rd = allr(R)
        elif op.startswith(("buffer_load", "global_load")):
            if "lds" in mods:
                self.kind = "DMA"; self.rd = allr(R) | {("s", "m0")}
            else:
                self.kind = "VL"; self.wr = R[0]; self.rd = allr(R[1:])
                if "d16" in op: self.rd |= R[0]
        elif op.startswith(("buffer_store", "global_store")):
            self.kind = "VS"; self.rd = allr(R)
        elif op.startswith("s_load"):
            self.kind = "SL"; self.wr = R[0]; self.rd = allr(R[1:])
        elif op.startswith(NODEST):
            self.kind = "S"; self.rd = allr(R)
            if "vcc" in op: self.rd |= {("s", "vcc")}
        elif op.startswith("s_"):
            self.kind = "S"; self.wr = R[0]; self.rd = allr(R[1:])
        else:
            raise ValueError("unknown instruction: " + t)
    def __repr__(self): return self.t

def WAITV(tag): return I(f"; waitv {tag}", kind="WAITV", arg=tag)
def WAITL(tag): return I(f"; waitl {tag}", kind="WAITL", arg=tag)
def WAITR(regs): return I("; waitr", kind="WAITR", arg=set().union(*[regs_of(r) for r in regs]))
def RAW(text): return I(text, kind="RAW")
def LABEL(name): return I(name + ":", kind="LABEL")
def OPT_BEGIN(name): return I("; opt begin " + name, kind="OB", arg=name)
def OPT_END(name): return I("; opt end " + name, kind="OE", arg=name)

def flatten(x):
    out = []
    for e in x:
        if e is None: continue
        if isinstance(e, (list, tuple)): out += flatten(e)
        elif isinstance(e, str):
            out += [I(l.strip()) for l in e.split("\n") if l.strip()]
        else: out.append(e)
    return out

def resolve_waits(prog, log=None):
    out = []; vq = []; lq = []; blk = None; auto = 0
    def need(q, idx):
        return sum(1 for e in q[idx + 1:] if e[2] is None or e[2] == blk)
    def emit(v=None, l=None):
        s = []
        if v is not None: s.append(f"vmcnt({min(v, 63)})")
        if l is not None: s.append(f"lgkmcnt({min(l, 15)})")
        w = I("s_waitcnt " + " ".join(s)); w.blk = blk; out.append(w)
    def settle(q, idx):
        if blk is None: del q[:idx + 1]
        else:
            for e in q[:idx + 1]: e[3].add(blk)
    def last(q, pred):
        r = -1
        for i, e in enumerate(q):
            if blk is not None and blk in e[3]: continue
            if pred(e): r = i
        return r
    for ins in prog:
        k = ins.kind
        if k == "OB": blk = ins.arg; out.append(ins); continue
        if k == "OE":
            b = blk; blk = None
            vq[:] = [e for e in vq if not (e[2] == b and b in e[3])]
            lq[:] = [e for e in lq if not (e[2] == b and b in e[3])]
            out.append(ins); continue
        ins.blk = blk
        if k == "WAITV":
            i = last(vq, lambda e: e[1] == ins.arg)
            if i >= 0: emit(v=need(vq, i)); settle(vq, i)
            continue
        if k == "WAITL":
            i = last(lq, lambda e: e[1] == ins.arg)
            if i >= 0: emit(l=need(lq, i)); settle(lq, i)
            continue
        touch = ins.arg if k == "WAITR" else (ins.rd | ins.wr)
        iv = last(vq, lambda e: e[0] & touch); il = last(lq, lambda e: e[0] & touch)
        if iv >= 0 or il >= 0:
            emit(need(vq, iv) if iv >= 0 else None, need(lq, il) if il >= 0 else None)
            if iv >= 0: settle(vq, iv)
            if il >= 0: settle(lq, il)
            if k != "WAITR":
                auto += 1
                if log is not None: log.append(f"auto wait before: {ins.t}")
        if k == "WAITR": continue
        if ins.op == "s_waitcnt":
            m = re.search(r"vmcnt\((\d+)\)", ins.t)
            if m and int(m.group(1)) == 0 and vq: settle(vq, len(vq) - 1)
            m = re.search(r"lgkmcnt\((\d+)\)", ins.t)
            if m and int(m.group(1)) == 0 and lq: settle(lq, len(lq) - 1)
        if k in ("VL", "VS", "DMA"): vq.append([set(ins.wr), ins.tag, blk, set()])
        if k in ("DR", "DW"): lq.append([set(ins.wr), ins.tag, blk, set()])
        out.append(ins)
    return out

def _states(ins):
    if ins.kind in ("LABEL", "OB", "OE"): return 0
    if ins.op == "s_nop": return int(ins.t.split()[1]) + 1
    return 1

def _need(p, c):
    n = 0
    pk, ck = p.kind, c.kind
    cM = ck in ("M16", "M32"); cV = ck in ("V", "T"); cMem = ck in ("DR", "DW", "VL", "VS", "DMA")
    if pk in ("V", "T"):
        vw = {r for r in p.wr if r[0] != "s"}; sw = {r for r in p.wr if r[0] == "s"}
        if cM and vw & c.rd: n = max(n, 2)
        if cV and vw & c.rd:
            if "dpp" in c.op and vw & c.ops[1]: n = max(n, 2)
            if "permlane" in c.op: n = max(n, 2)
            if "readfirstlane" in c.op or "readlane" in c.op: n = max(n, 1)
            if pk == "T" and ck == "V": n = max(n, 1)
        if pk == "T" and cMem and vw & c.rd: n = max(n, 1)
        if sw:
            if cV and sw & c.rd: n = max(n, 2)
            if cMem and sw & c.rd: n = max(n, 5)
            if ck in ("S", "SL") and sw & c.rd: n = max(n, 1)
    if pk in ("M16", "M32"):
        big = pk == "M32"
        if cM:
            srcc = c.ops[3]; ab = c.ops[1] | c.ops[2]
            if p.wr & ab: n = max(n, 12 if big else 8)
            if p.wr & srcc and not (p.wr == srcc and pk == ck): n = max(n, 10 if big else 6)
            if p.wr & c.wr and not (p.wr == srcc and pk == ck): n = max(n, 10 if big else 6)
        elif cV or cMem:
            if p.wr & (c.rd | c.wr): n = max(n, 12 if big else 8)
            if cV and p.ops[3] & c.wr: n = max(n, 7 if big else 3)
    if pk == "S" and ("s", "m0") in p.wr and ck == "DMA": n = max(n, 1)
    if pk == "S" and ("s", "exec") in p.wr and (cM or "dpp" in c.op): n = max(n, 0)
    if pk == "VS" and ("x4" in p.op or "x3" in p.op) and p.ops[0] & c.wr: n = max(n, 2 if cV else 1)
    if pk == "DW" and "b128" in p.op and p.ops[1] & c.wr: n = max(n, 1)
    return n

def pad_hazards(prog, log=None):
    blocks = sorted({i.blk for i in prog if i.blk is not None})
    variants = [set(blocks), set()] + [{b} for b in blocks] + [set(blocks) - {b} for b in blocks]
    while True:
        add = {}
        for on in variants:
            seq = [i for i, x in enumerate(prog) if x.blk is None or x.blk in on]
            for a, ci in enumerate(seq):
                c = prog[ci]
                if c.kind in ("LABEL", "OB", "OE", "RAW"): continue
                dist = 0
                for b in range(a - 1, max(a - 24, -1), -1):
                    p = prog[seq[b]]
                    n = _need(p, c) if p.kind not in ("LABEL", "OB", "OE", "RAW") else 0
                    if n > dist: add[ci] = max(add.get(ci, 0), n - dist)
                    dist += _states(p)
                    if dist >= 12: break
        if not add: return prog
        first = min(add)
        new = []
        for i, x in enumerate(prog):
            if i in add and all(not (i - 14 < j < i) for j in add if j != i):
                w = I(f"s_nop {add[i]-1}"); w.blk = x.blk; new.append(w)
                if log is not None: log.append(f"nop {add[i]} before: {x.t}")
            new.append(x)
        prog = new

def render(prog):
    return "\n".join(("" if i.kind == "LABEL" else "  ") + i.t for i in prog)
```

```python
from asmlib import *

class Gap:
    __slots__ = ("m", "pre", "rd", "vm", "val", "post", "blocks", "big")
    def __init__(self, m):
        self.m = m; self.big = m.kind == "M32"
        self.pre = []; self.rd = []; self.vm = []; self.val = []; self.post = []; self.blocks = []
    def units(self):
        return sum(2 if x.kind == "T" else 1 for x in self.val)
    def fits(self, ins):
        u = 2 if ins.kind == "T" else 1
        if self.big:
            cap = 2 if self.vm else 4
            if len(self.rd) > 2: cap -= 2
            return self.units() + u <= cap and len(self.val) < 3
        if self.vm or self.val or self.post or self.pre: return False
        if u == 2: return len(self.rd) == 0
        return len(self.rd) <= 1
    def fits_s(self):
        if self.big: return not self.pre
        return not (self.vm or self.val or self.post or self.pre) and len(self.rd) <= 1
    def emit(self):
        return [self.m] + self.pre + self.rd + self.vm + self.val + self.post + self.blocks

class Stream:
    def __init__(self):
        self.g = []
        self.frag = []
        self.frags = []
        self.marks = {}
    def mark(self, name): self.marks[name] = len(self.g)
    def add_frag(self, mk, after):
        self.frags.append(dict(mk=mk, first=None, last=None, after=after)); return len(self.frags) - 1
    def add(self, mk, frag):
        i = len(self.g); self.g.append(None); self.frag.append((mk, frag))
        f = self.frags[frag]
        if f["first"] is None: f["first"] = i
        f["last"] = i
    def build(self, ring, bars, lead32=6, lead16=12, clear=()):
        n = len(ring)
        for k, f in enumerate(self.frags):
            f["base"] = ring[k % n]; f["regs"] = f"a[{f['base']}:{f['base']+3}]"
        for i, (mk, fr) in enumerate(self.frag):
            self.g[i] = Gap(I(mk(self.frags[fr]["regs"])))
        self.head = []
        pend = []
        for k, f in enumerate(self.frags):
            for j, t in enumerate(f["mk"](f["base"])):
                pend.append((k, I(t)))
        ptr = 0; clear = set(clear)
        def allowed(k, gi):
            f = self.frags[k]
            if k >= n and self.frags[k - n]["last"] > gi: return False
            if f["after"] is not None and bars[f["after"]] > gi: return False
            return True
        while ptr < len(pend) and self.frags[pend[ptr][0]]["first"] < lead32 and allowed(pend[ptr][0], -1):
            self.head.append(pend[ptr][1]); self.frags[pend[ptr][0]]["at"] = -1; ptr += 1
        for gi, g in enumerate(self.g):
            lead = lead32 if g.big else lead16
            base = 2 if g.big else 1
            nxt_clear = (gi + 1) in clear
            while ptr < len(pend):
                k = pend[ptr][0]; f = self.frags[k]
                if not allowed(k, gi): break
                slack = f["first"] - gi
                cap = base
                if not g.big and nxt_clear: cap = 2
                if slack < lead - (1 if g.big else 2): cap = 2 * base
                if gi in clear: cap = 0 if slack > 6 else 1
                if slack <= (2 if g.big else 4): cap = 4
                if slack > lead + (0 if g.big else (1 if nxt_clear else 0)) or len(g.rd) >= cap: break
                g.rd.append(pend[ptr][1]); f["at"] = gi; ptr += 1
        assert ptr == len(pend)
        for k, f in enumerate(self.frags):
            assert f["at"] < f["first"], (k, f)
    def place_waits(self, age32=3, age16=6):
        cov = -1
        for gi in range(-1, len(self.g) - 1):
            look = 1 if (gi < 0 or self.g[gi].big) else 2
            need = max(self.frag[j][1] for j in range(gi + 1, min(gi + 1 + look, len(self.g))))
            if need <= cov: continue
            must = self.frag[gi + 1][1] > cov
            if gi >= 0 and not must and not self.g[gi].fits_s(): continue
            age = age32 if (gi < 0 or self.g[gi].big) else age16
            k = self.frag[gi + 1][1] if must else cov
            while k + 1 < len(self.frags) and self.frags[k + 1]["at"] <= gi - age: k += 1
            if k <= cov: continue
            w = WAITR([self.frags[k]["regs"]])
            if gi < 0: self.head.append(w)
            elif self.frags[k]["at"] == gi: self.g[gi].post.append(w)
            else: self.g[gi].pre.insert(0, w)
            cov = k
    def put_s(self, ins, lo, hi):
        for gi in range(hi, lo - 1, -1):
            if self.g[gi].fits_s():
                self.g[gi].pre += flatten([ins]); return gi
        self.g[hi].pre += flatten([ins]); return hi
    def put_v(self, ops, lo, hi):
        ops = flatten(ops); where = []; gi = lo; n = len(ops)
        for j, x in enumerate(ops):
            gi = max(gi, lo + (j * (hi - lo)) // n - 2)
            while gi < hi - 1 and not self.g[gi].fits(x): gi += 1
            self.g[gi].val.append(x); where.append(gi)
        return where
    def emit(self):
        out = list(self.head)
        for g in self.g: out += g.emit()
        return out
```

```python
import sys, struct
from asmlib import *
from sched import *

NAME = "parallel_sum__spectral_gfnet__dense_activation_silu__prompt"
LOG2E = 1.4426950408889634
def fhex(x): return "0x%08x" % struct.unpack("<I", struct.pack("<f", x))[0]

FL1, FL2, FLH = 0x1000, 0x2000, 0x3000
CS, GD, T1, T2, HB, PB, WS_END = 0x10000, 0x50000, 0x200000, 0x480000, 0x800000, 0x1A00000, 0x2C00000
OOB = 0x40000000
SP = 0
SLOT = [16384 + 36864 * k for k in range(4)]
WIN = [16384, 65536, 114688]
def win(addr):
    w = 0 if addr < WIN[1] else (1 if addr < WIN[2] else 2)
    return w, addr - WIN[w]
SX, SW1, SW2, SWS, SWR, SWI = 4, 8, 12, 16, 20, 24
sW, sMI, sFJ, sQ, sR, sB, sNON, sROT, sM0, sWG, sI, sXCD = 28, 29, 30, 31, 32, 33, 34, 35, 36, 37, 38, 39
sW1T, sW2T = 40, 58
sTAU0, sKS0, sTAU1, sTAU2, sHST, sHLD, sPST, sSGN = 76, 77, 78, 79, 80, 81, 82, 84
sT = list(range(86, 101))
def srd(n): return f"s[{n}:{n+3}]"
vLANE, vL16, vL8, vDW1F, vDW1H, vDW2F, vDW2H = 1, 2, 3, 4, 5, 6, 7
vG1 = [[8, 9, 10], [11, 12, 13]]; vG1H = 14
vG2 = [[15 + 3 * n + k for k in range(3)] for n in range(4)]
vG2H = [[27, 28], [29, 30]]; vGDW2, vGDW1, vSGN = 31, 32, 33
vE = list(range(34, 40))
H0 = 40
def Hreg(k): return H0 + 8 * k
def RAWX(t, j): return 112 + 4 * (18 * t + j)
def ACC1(p): return 112 + 16 * (p % 3)
def ACC2(tile, t): return 248 - 8 * tile + 4 * t
vE1, vP1 = 40, 56
vWR = [184, 200]; vWI = [220, 236]; vZ = [160, 168]; vZS = [216, 252]; vZA = [96, 100, 104, 108]; vPT = 176
aRING = [144 + 4 * k for k in range(8)]
aE3, aCS, aHP, aT2 = 176, 192, 0, 72
aU = [152 + 4 * k for k in range(6)] + [192 + 4 * k for k in range(12)]
aFD = [144, 148, 240, 244, 248, 252]
def vr(b, n=4): return f"v[{b}:{b+n-1}]"
def ar(b, n=4): return f"a[{b}:{b+n-1}]"
M16 = "v_mfma_f32_16x16x32_bf16"; M32 = "v_mfma_f32_32x32x16_bf16"
DPPSW = "quad_perm:[1,0,3,2] row_mask:0xf bank_mask:0xf"

def tagged(text, tag): return I(text, tag=tag)

def mk_srd(n, lo, size):
    return f"s_mov_b32 s{n}, s{lo}\ns_mov_b32 s{n+1}, s{lo+1}\ns_mov_b32 s{n+2}, {size}\ns_mov_b32 s{n+3}, 0x20000"

def cos8(dst, tmp, base, step, ks, sin_dst=None):
    o = []
    for half in range(2):
        for e in range(4):
            k = ks[4 * half + e]
            o.append(f"v_fmamk_f32 v{tmp+e}, v{step}, {fhex(k)}, v{base}" if k else f"v_mov_b32 v{tmp+e}, v{base}")
        if sin_dst is not None:
            for e in range(4): o.append(f"v_sin_f32 v{tmp+4+e}, v{tmp+e}")
        for e in range(4): o.append(f"v_cos_f32 v{tmp+e}, v{tmp+e}")
        if sin_dst is not None:
            for e in range(2): o.append(f"v_cvt_pk_bf16_f32 v{sin_dst+2*half+e}, v{tmp+4+2*e}, v{tmp+5+2*e}")
        for e in range(2): o.append(f"v_cvt_pk_bf16_f32 v{dst+2*half+e}, v{tmp+2*e}, v{tmp+1+2*e}")
    return o

def mod576(dst, t):
    return [f"v_mul_hi_u32 v{t}, v{dst}, s{sT[14]}", f"v_mul_u32_u24 v{t}, 576, v{t}", f"v_sub_u32 v{dst}, v{dst}, v{t}"]

def col_off(dst, tau):
    return f"s_cmp_lt_u32 s{tau}, 18\ns_cselect_b32 s{dst}, 2, -287\ns_lshl_b32 s{sT[13]}, s{tau}, 4\ns_add_i32 s{dst}, s{dst}, s{sT[13]}"

def spin(name, load, reg, nreg=1):
    cmpv = lambda: "\n".join([f"v_cmp_ne_u32 vcc, s{sNON}, v{reg}"] +
                             [f"v_cmp_ne_u32 s[{sT[10]}:{sT[10]+1}], s{sNON}, v{reg+k}\ns_or_b64 vcc, vcc, s[{sT[10]}:{sT[10]+1}]" for k in range(1, nreg)])
    return [WAITR([vr(reg, nreg) if nreg > 1 else f"v{reg}"]),
            RAW(f"""{cmpv()}
  s_cbranch_vccz L_{name}_ok
  s_mov_b32 s{sT[12]}, 0
L_{name}_spin:
  s_sleep 1
  {load}
  s_waitcnt vmcnt(0)
  {cmpv()}
  s_cbranch_vccz L_{name}_ok
  s_add_u32 s{sT[12]}, s{sT[12]}, 1
  s_cmp_lt_u32 s{sT[12]}, 0x8000
  s_cbranch_scc1 L_{name}_spin
L_{name}_ok:
  s_nop 1""")]

def opt(name, cond, body):
    return [cond, f"s_cbranch_scc0 L_{name}", OPT_BEGIN(name), body, OPT_END(name), LABEL("L_" + name)]

def flag_store(off_s, tag="flag"):
    return [f"s_cmp_eq_u32 s{sW}, 0\ns_cselect_b32 s{off_s}, s{off_s}, {OOB}\nv_mov_b32 v0, s{sNON}",
            tagged(f"buffer_store_dword v0, off, {srd(SWS)}, s{off_s} sc1", tag)]

class Cfg:
    spectral = True
    stamps = False
    dense = True

def prologue(c):
    p = []; a = p.append
    a(f"s_cmp_ge_u32 s2, 256\ns_cbranch_scc1 L_exit")
    a(f"s_load_dwordx4 s[88:91], s[0:1], 0\ns_load_dwordx2 s[92:93], s[0:1], 16\ns_load_dwordx4 s[96:99], s[0:1], 32\ns_load_dwordx2 s[94:95], s[0:1], 64")
    a(f"v_lshrrev_b32 v8, 6, v0\nv_and_b32 v{vLANE}, 63, v0\nv_readfirstlane_b32 s{sW}, v8")
    a(f"s_mov_b32 s{sWG}, s2\ns_and_b32 s{sXCD}, s2, 7\ns_lshr_b32 s{sI}, s2, 3")
    a(f"s_lshr_b32 s{sFJ}, s{sXCD}, 1\ns_lshl_b32 s{sFJ}, s{sFJ}, 2\ns_and_b32 s86, s{sI}, 3\ns_add_u32 s{sFJ}, s{sFJ}, s86")
    a(f"s_and_b32 s{sMI}, s{sXCD}, 1\ns_lshl_b32 s{sMI}, s{sMI}, 3\ns_lshr_b32 s87, s{sI}, 2\ns_add_u32 s{sMI}, s{sMI}, s87")
    a(f"s_lshr_b32 s{sQ}, s{sFJ}, 1\ns_and_b32 s{sR}, s{sFJ}, 1\ns_lshl_b32 s{sB}, s{sMI}, 2\ns_add_u32 s{sB}, s{sB}, s{sW}")
    a(f"s_mul_i32 s{sROT}, s86, 5\ns_and_b32 s{sROT}, s{sROT}, 0xfe")
    a(f"s_lshl_b32 s{sM0}, s{sW}, 10")
    a(f"v_lshlrev_b32 v{vL16}, 4, v{vLANE}\nv_lshlrev_b32 v{vL8}, 3, v{vLANE}")
    a(f"v_lshrrev_b32 v8, 2, v{vLANE}\nv_and_b32 v9, 3, v{vLANE}\nv_mul_u32_u24 v10, 73728, v8\nv_lshl_add_u32 v10, v9, 4, v10\nv_add_u32 v11, 1179648, v10")
    for j in range(18):
        a(f"s_add_u32 s86, s{sROT}, {j}\ns_cmp_ge_u32 s86, 18\ns_cselect_b32 s87, 18, 0\ns_sub_u32 s{sW1T+j}, s86, s87")
    a("s_waitcnt lgkmcnt(0)")
    a(mk_srd(SX, 88, 2359296)); a(mk_srd(SWS, 94, WS_END))
    a(f"s_load_dword s{sNON}, s[94:95], 0")
    a(f"s_mul_i32 s100, s{sB}, 1152")
    for j in range(0, 18, 2):
        a(f"s_lshl_b32 s86, s{sW1T+j}, 6\ns_add_u32 s86, s86, s100")
        for t in range(2):
            for h in range(2):
                a(tagged(f"buffer_load_dwordx4 {vr(RAWX(t, j+h))}, v{10+t}, {srd(SX)}, s86 offen offset:{64*h}", "x"))
    a(mk_srd(SW1, 96, 5308416)); a(mk_srd(SW2, 98, 5308416)); a(mk_srd(SWR, 90, 1183744)); a(mk_srd(SWI, 92, 1183744))
    a(f"""v_lshrrev_b32 v12, 3, v{vLANE}
s_lshl_b32 s86, s{sW}, 3
v_add_u32 v13, s86, v12
v_and_b32 v14, 7, v{vLANE}
v_bfe_u32 v15, v12, 1, 1
v_lshlrev_b32 v16, 2, v15
v_xor_b32 v16, v16, v14
v_mul_u32_u24 v{vDW1F}, 9216, v13
v_lshl_add_u32 v{vDW1F}, v16, 4, v{vDW1F}
s_mul_i32 s86, s{sFJ}, 576
s_lshl_b32 s87, s{sR}, 6
s_add_u32 s87, s87, s86
v_add_u32 v{vDW1F}, s87, v{vDW1F}""")
    for j in range(18): a(f"s_mul_i32 s{sW1T+j}, s{sW1T+j}, 294912")
    for half in range(2):
        for i in range(9): a(dma_w1(0, half, i, "blk0"))
    a("s_getpc_b64 s[86:87]"); a(LABEL("L_pc"))
    a(f"""s_lshl_b32 s88, s{sI}, 11
s_lshl_b32 s89, s{sW}, 9
s_add_u32 s88, s88, s89
v_and_b32 v17, 3, v{vLANE}
v_lshl_add_u32 v17, v17, 7, s88
v_min_u32 v17, L_exit-L_pc, v17
v_mov_b32 v19, s87
v_add_co_u32 v18, vcc, s86, v17
v_addc_co_u32 v19, vcc, 0, v19, vcc""")
    a(tagged("global_load_dword v39, v[18:19], off", "pf"))
    a(f"""v_bfe_u32 v16, v13, 4, 1
v_lshl_add_u32 v16, v16, 1, v15
v_lshlrev_b32 v16, 1, v16
v_xor_b32 v16, v16, v14
v_mul_u32_u24 v{vDW2F}, 1152, v13
v_lshl_add_u32 v{vDW2F}, v16, 4, v{vDW2F}
s_mul_i32 s86, s{sR}, 640
v_add_u32 v{vDW2F}, s86, v{vDW2F}
s_and_b32 s88, s{sW}, 1
s_lshl_b32 s86, s88, 4
v_add_u32 v13, s86, v8
v_mul_u32_u24 v{vDW1H}, 9216, v13
v_lshl_add_u32 v{vDW1H}, v9, 4, v{vDW1H}
s_mul_i32 s86, s{sFJ}, 576
s_lshl_b32 s87, s{sR}, 9
s_sub_u32 s86, s86, s87
s_add_u32 s86, s86, 512
v_add_u32 v{vDW1H}, s86, v{vDW1H}
s_lshl_b32 s88, s88, 1
v_xor_b32 v16, s88, v9
v_mul_u32_u24 v{vDW2H}, 1152, v13
v_lshl_add_u32 v{vDW2H}, v16, 4, v{vDW2H}
s_lshl_b32 s86, s{sR}, 6
s_add_u32 s86, s86, 512
v_add_u32 v{vDW2H}, s86, v{vDW2H}""")
    a(f"s_lshl_b32 s{sTAU0}, s{sFJ}, 1")
    for th in (2, 6, 8, 12): a(f"s_cmp_gt_u32 s{sFJ}, {th}\ns_addc_u32 s{sTAU0}, s{sTAU0}, 0")
    a(f"s_lshl_b32 s{sKS0}, s{sQ}, 1")
    for th in (0, 2): a(f"s_cmp_gt_u32 s{sQ}, {th}\ns_addc_u32 s{sKS0}, s{sKS0}, 0")
    a(f"s_mov_b32 s{sTAU1}, s{sI}\ns_lshr_b32 s{sTAU2}, s{sI}, 3\ns_add_u32 s{sTAU2}, s{sTAU2}, 32")
    a(f"s_cmp_lt_u32 s{sFJ}, 8\ns_cselect_b32 s{sSGN}, 1.0, -1.0\ns_mov_b32 s{sSGN+1}, s{sSGN}")
    a(f"s_mov_b32 s{sT[14]}, {(2**32 + 575)//576}")
    a(f"s_waitcnt lgkmcnt(0)\ns_mul_i32 s{sNON}, s{sNON}, 0x9e3779b1\ns_add_u32 s{sNON}, s{sNON}, 0x7f4a7c15")
    if c.spectral: a(tables(c))
    for side in range(2):
        a(f"s_xor_b32 s86, s{sFJ}, {side}\ns_and_b32 s87, s86, 1\ns_mul_i32 s86, s86, 288\ns_lshl_b32 s88, s87, 5\ns_add_u32 s88, s88, s86\ns_mul_i32 s88, s88, 1152")
        for k in range(8): a(f"s_add_u32 s{sW2T+9*side+k}, s88, {36864*k}")
        a(f"s_lshl_b32 s87, s87, 8\ns_sub_u32 s86, s86, s87\ns_add_u32 s86, s86, 256\ns_mul_i32 s{sW2T+9*side+8}, s86, 1152")
    a(f"s_lshl_b32 s86, s{sMI}, 4\ns_add_u32 s87, s86, s{sFJ}\ns_lshl_b32 s87, s87, 2\ns_add_u32 s87, s87, s{sW}\ns_mul_i32 s87, s87, 18432\ns_add_u32 s{sHST}, s87, {HB}")
    a(f"s_xor_b32 s87, s{sFJ}, 1\ns_add_u32 s87, s86, s87\ns_lshl_b32 s87, s87, 2\ns_add_u32 s87, s87, s{sW}\ns_mul_i32 s87, s87, 18432\ns_add_u32 s{sHLD}, s87, {HB}")
    a(f"s_lshl_b32 s86, s{sMI}, 1\ns_add_u32 s86, s86, s{sR}\ns_lshl_b32 s86, s86, 2\ns_add_u32 s86, s86, s{sW}\ns_mul_i32 s86, s86, {18*8192}\ns_lshl_b32 s87, s{sQ}, 10\ns_add_u32 s86, s86, s87\ns_add_u32 s{sPST}, s86, {PB}")
    return p

def dma_w1(beta, half, i, tag):
    lds = SLOT[2 * (beta & 1) + half] + 4096 * i - 128 * beta
    return [f"s_add_u32 m0, s{sM0}, {lds}",
            tagged(f"buffer_load_dwordx4 v{vDW1F}, {srd(SW1)}, s{sW1T+9*half+i} offen offset:{128*beta} lds", tag)]

def tables(c):
    p = []; a = p.append
    a(f"v_and_b32 v12, 15, v{vLANE}\nv_lshrrev_b32 v13, 4, v{vLANE}")
    a(f"v_and_b32 v14, 1, v{vLANE}\nv_cvt_f32_u32 v14, v14\nv_mul_f32 v14, 0x3e800000, v14")
    a(f"v_and_b32 v15, 14, v{vLANE}\nv_lshlrev_b32 v16, 3, v13")
    for n in range(7):
        a(f"s_add_u32 s86, s{sW}, {4*n}\ns_mul_i32 s87, s86, 57\ns_lshr_b32 s87, s87, 9\ns_mul_i32 s88, s87, 9\ns_sub_u32 s88, s86, s88")
        a(f"s_add_u32 s89, s{sROT}, s88\ns_cmp_ge_u32 s89, 18\ns_cselect_b32 s90, 18, 0\ns_sub_u32 s89, s89, s90\ns_lshl_b32 s89, s89, 5")
        a(f"s_add_u32 s87, s87, s{sTAU0}"); a(col_off(90, 87))
        a(f"v_add_u32 v17, s90, v15\nv_add_u32 v18, s89, v16\nv_mul_u32_u24 v18, v17, v18"); a(mod576(18, 19))
        a(f"v_cvt_f32_u32 v17, v17\nv_cvt_f32_u32 v18, v18\nv_mul_f32 v17, {fhex(1/576)}, v17\nv_fmamk_f32 v18, v18, {fhex(1/576)}, v14")
        a(cos8(30, 22, 18, 17, [0, 1, 2, 3, 4, 5, 6, 7]))
        a(f"s_lshl_b32 s86, s86, 10\ns_add_u32 s86, s86, {SLOT[2]}\nv_add_u32 v19, s86, v{vL16}")
        a(tagged(f"ds_write_b128 v19, v[30:33]", "fd"))
    a(f"v_lshlrev_b32 v17, 8, v13\nv_add_u32 v17, s{sB}, v17\nv_cvt_f32_u32 v17, v17\nv_mul_f32 v17, {fhex(1/2048)}, v17")
    for kt in range(2):
        a(f"v_add_u32 v18, {16*kt}, v12\nv_cvt_f32_u32 v18, v18\nv_mul_f32 v19, v18, v17")
        a(cos8(vE1 + 4 * kt, 22, 19, 18, [(e >> 2) / 2 + (e & 3) / 32 for e in range(8)], sin_dst=vE1 + 8 + 4 * kt))
    a(f"v_lshlrev_b32 v17, 2, v13\nv_cvt_f32_u32 v17, v17")
    K16 = [16 * (e >> 2) + (e & 3) for e in range(8)]
    for t in range(2):
        a(f"v_add_u32 v18, {16*t}, v12\nv_lshlrev_b32 v18, 6, v18\nv_add_u32 v18, s{sB}, v18\nv_cvt_f32_u32 v18, v18\nv_mul_f32 v18, {fhex(1/2048)}, v18\nv_mul_f32 v19, v18, v17")
        a(cos8(30, 22, 19, 18, K16, sin_dst=34))
        for e in range(4): a(f"v_accvgpr_write_b32 a{aE3+4*t+e}, v{30+e}\nv_accvgpr_write_b32 a{aE3+8+4*t+e}, v{34+e}")
    a(f"s_and_b32 s86, s{sB}, 1\ns_lshl_b32 s86, s86, 5\ns_bfe_u32 s87, s{sB}, 0x20001\ns_lshl_b32 s87, s87, 4\ns_bitcmp1_b32 s{sB}, 3\ns_cselect_b32 s88, {fhex(-0.25)}, 0")
    a(f"v_add_u32 v18, s87, v12\nv_cvt_f32_u32 v18, v18\nv_mul_f32 v18, {fhex(1/64)}, v18\nv_lshl_add_u32 v19, v13, 2, s86\nv_cvt_f32_u32 v19, v19\nv_fma_f32 v19, v19, v18, s88")
    a(cos8(30, 22, 19, 18, K16))
    a(f"s_lshl_b32 s86, s{sFJ}, 14\ns_lshl_b32 s87, s{sB}, 10\ns_add_u32 s86, s86, s87\ns_add_u32 s86, s86, {CS}\ns_cmp_lt_u32 s{sB}, 16\ns_cselect_b32 s86, s86, {OOB}")
    a(tagged(f"buffer_store_dwordx4 v[30:33], v{vL16}, {srd(SWS)}, s86 offen sc1", "tab"))
    a(f"s_mul_i32 s86, s{sB}, 57\ns_lshr_b32 s86, s86, 10\ns_mul_i32 s87, s86, 18\ns_sub_u32 s87, s{sB}, s87")
    a(f"s_lshl_b32 s88, s87, 4\ns_mul_i32 s89, s{sR}, 320\ns_add_u32 s89, s89, s88\ns_lshl_b32 s90, s{sR}, 5\ns_add_u32 s90, s90, s88\ns_cmp_lt_u32 s87, 16\ns_cselect_b32 s89, s89, s90")
    a(f"s_add_u32 s86, s86, s{sKS0}\ns_lshl_b32 s86, s86, 1"); a(col_off(90, 86))
    a(f"v_add_u32 v17, s89, v12\nv_lshl_add_u32 v18, v13, 2, s90")
    for k in range(4):
        a(f"v_add_u32 v19, {16*(k>>1) + 2*(k&1)}, v18\nv_cmp_eq_u32 vcc, 0x120, v19\nv_mul_u32_u24 v19, v19, v17"); a(mod576(19, 20))
        a(f"v_mov_b32 v20, {fhex(2/(2048*576))}\nv_mov_b32 v21, {fhex(1/(2048*576))}\nv_cndmask_b32 v20, v20, v21, vcc")
        a(f"v_cvt_f32_u32 v19, v19\nv_mul_f32 v22, {fhex(1/576)}, v19\nv_add_f32 v23, 0x3e800000, v22\nv_cos_f32 v22, v22\nv_cos_f32 v23, v23\nv_mul_f32 v22, v22, v20\nv_mul_f32 v23, v23, v20")
        a(f"v_cvt_pk_bf16_f32 v{34+k}, v22, v23")
    a(f"s_mul_i32 s86, s{sFJ}, 55296\ns_lshl_b32 s87, s{sB}, 10\ns_add_u32 s86, s86, s87\ns_add_u32 s86, s86, {GD}\ns_cmp_lt_u32 s{sB}, 54\ns_cselect_b32 s86, s86, {OOB}")
    a(tagged(f"buffer_store_dwordx4 v[34:37], v{vL16}, {srd(SWS)}, s86 offen sc1", "tab"))
    return p

def w_loads(rnd, js):
    p = []
    for j in js:
        for r in range(4):
            p.append(f"s_mov_b32 s{sT[0]}, {(16*j + r)*18496}")
            p.append(tagged(f"buffer_load_ushort v{vWR[rnd]+4*j+r}, v0, {srd(SWR)}, s{sT[0]} offen", f"w{rnd}"))
            p.append(tagged(f"buffer_load_ushort v{vWI[rnd]+4*j+r}, v0, {srd(SWI)}, s{sT[0]} offen", f"w{rnd}"))
    return p
def w_addr(tau):
    return [col_off(sT[1], tau), f"""s_lshl_b32 s{sT[2]}, s{sXCD}, 2
s_add_u32 s{sT[2]}, s{sT[2]}, s{sW}
s_mul_i32 s{sT[2]}, s{sT[2]}, 578
s_lshl_b32 s{sT[1]}, s{sT[1]}, 1
s_add_u32 s{sT[1]}, s{sT[1]}, s{sT[2]}
v_lshrrev_b32 v0, 4, v{vLANE}
v_mul_u32_u24 v0, 73984, v0
v_and_b32 v38, 14, v{vLANE}
v_lshl_add_u32 v0, v38, 1, v0
v_add_u32 v0, s{sT[1]}, v0"""]

def layernorm(c):
    p = []; a = p.append
    ones = sT[3]
    a(f"s_mov_b32 s{ones}, 0x3f803f80")
    for k in range(8): a(f"v_mov_b32 v{22+k}, 0")
    for j in range(0, 18, 2):
        for t in range(2):
            for h in range(2):
                for i in range(4):
                    r = RAWX(t, j + h) + i
                    a(f"v_dot2c_f32_bf16 v{22+2*t+(i&1)}, s{ones}, v{r}\nv_dot2c_f32_bf16 v{26+2*t+(i&1)}, v{r}, v{r}")
    for k in range(4): a(f"v_add_f32 v{22+2*k}, v{22+2*k}, v{23+2*k}")
    for q in ("[1,0,3,2]", "[2,3,0,1]"):
        for k in range(4): a(f"v_add_f32_dpp v{22+2*k}, v{22+2*k}, v{22+2*k} quad_perm:{q} row_mask:0xf bank_mask:0xf")
    rb = lambda r: f"v_cvt_pk_bf16_f32 v{r}, v{r}, v{r}\nv_lshlrev_b32 v{r}, 16, v{r}"
    for t in range(2):
        m, v, R = 22 + 2 * t, 26 + 2 * t, 30 + 2 * t
        a(f"v_mul_f32 v{m}, {fhex(1/576)}, v{m}\nv_mul_f32 v{v}, {fhex(1/576)}, v{v}\nv_fma_f32 v{v}, -v{m}, v{m}, v{v}\nv_max_f32 v{v}, 0, v{v}")
        a(rb(m)); a(rb(v)); a(f"v_add_f32 v{v}, {fhex(1e-5)}, v{v}"); a(rb(v)); a(f"v_sqrt_f32 v{v}, v{v}"); a(rb(v))
        a(f"v_rcp_f32 v{v}, v{v}\nv_mul_f32 v{R}, {fhex(-LOG2E)}, v{v}\nv_mul_f32 v{R+1}, -v{m}, v{R}")
    XB, UB = 0, 4352
    a(f"""s_mul_i32 s86, s{sW}, 6656
s_add_u32 s86, s86, {SLOT[3]}
v_lshrrev_b32 v8, 2, v{vLANE}
v_and_b32 v9, 3, v{vLANE}
v_lshrrev_b32 v10, 1, v9
v_mul_u32_u24 v10, 1088, v10
v_and_b32 v11, 1, v9
v_mad_u32_u24 v10, v11, s{sT[4]}, v10
v_lshl_add_u32 v10, v8, 4, v10
v_add_u32 v10, s86, v10
v_lshlrev_b32 v11, 1, v9
v_xor_b32 v11, v11, v8
v_lshlrev_b32 v11, 4, v11
v_lshl_add_u32 v11, v9, 8, v11
v_add_u32 v11, s86, v11
v_lshrrev_b32 v12, 5, v{vLANE}
v_mul_u32_u24 v12, 544, v12
v_and_b32 v13, 31, v{vLANE}
v_lshl_add_u32 v12, v13, 4, v12
v_add_u32 v12, s86, v12
v_lshrrev_b32 v13, 4, v{vLANE}
v_and_b32 v14, 15, v{vLANE}
v_lshlrev_b32 v15, 1, v13
v_xor_b32 v14, v14, v15
v_lshlrev_b32 v14, 4, v14
v_lshl_add_u32 v13, v13, 8, v14
v_add_u32 v13, s86, v13
v_add_u32 v14, {SLOT[2]}, v{vL16}""".replace(f"v_mad_u32_u24 v10, v11, s{sT[4]}, v10", f"s_movk_i32 s{sT[4]}, 544\nv_mad_u32_u24 v10, v11, s{sT[4]}, v10"))
    if c.spectral:
        a(w_addr(sTAU1))
        a([WAITL("fd"), "s_barrier"])
    msk = sT[5]
    a(f"s_mov_b32 s{msk}, 0xffff0000")
    def p1a(j):
        return [f"{M16} {vr(vP1+8*ti+4*t)}, {ar(aU[2*j+t])}, {ar(aFD[(2*j+ti)%6])}, {'0' if j == 0 else vr(vP1+8*ti+4*t)}" for ti in range(2) for t in range(2)]
    for j in range(9):
        mf = p1a(j - 1) if (c.spectral and j > 0) else []
        for t in range(2):
            R = 30 + 2 * t; U = 34
            for i0 in range(0, 4, 2):
                ops = [[], []]
                for s in range(2):
                    i = i0 + s; r1, r2 = RAWX(t, j) + i, RAWX(t, j + 9) + i; f1, f2 = 16 + 4 * s, 18 + 4 * s; u = 24 + 2 * s
                    o = ops[s]
                    o += [f"v_lshlrev_b32 v{f1}, 16, v{r1}", f"v_and_b32 v{f1+1}, s{msk}, v{r1}", f"v_lshlrev_b32 v{f2}, 16, v{r2}", f"v_and_b32 v{f2+1}, s{msk}, v{r2}"]
                    for f in (f1, f2): o.append(f"v_pk_fma_f32 v[{f}:{f+1}], v[{f}:{f+1}], v[{R}:{R+1}], v[{R}:{R+1}] op_sel:[0,0,1] op_sel_hi:[1,0,1]")
                    o += [f"v_cvt_pk_bf16_f32 v{r1}, v{f1}, v{f1+1}", f"v_cvt_pk_bf16_f32 v{r2}, v{f2}, v{f2+1}"]
                    if c.spectral:
                        o += [f"v_pk_fma_f32 v[{u}:{u+1}], v[{f2}:{f2+1}], s[{sSGN}:{sSGN+1}], v[{f1}:{f1+1}]", f"v_cvt_pk_bf16_f32 v{U+i}, v{u}, v{u+1}"]
                for x, y in zip(*ops): a(x); a(y)
                if mf: a(mf.pop(0))
            a(f"ds_write_b128 v10, {vr(RAWX(t, j))} offset:{XB+256*t}\nds_write_b128 v10, {vr(RAWX(t, j+9))} offset:{XB+2176+256*t}")
            if c.spectral: a(f"ds_write_b128 v11, {vr(U)} offset:{UB+1024*t}")
        for sg in range(2):
            for k in range(2):
                a(f"ds_read_b128 {ar(4*(2*(j+9*sg)+k))}, v12 offset:{XB+2176*sg+1088*k}")
        if c.spectral:
            for t in range(2): a(f"ds_read_b128 {ar(aU[2*j+t])}, v13 offset:{UB+1024*t}")
            for ti in range(2): a(f"ds_read_b128 {ar(aFD[(2*j+ti)%6])}, v14 offset:{1024*(9*ti+j)}")
            if 1 <= j <= 4: a(w_loads(0, [j - 1]))
    if c.spectral:
        a(p1a(8))
        a(f"""v_and_b32 v8, 15, v{vLANE}
v_lshrrev_b32 v9, 4, v{vLANE}
s_lshl_b32 s86, s{sW}, 2
v_add_u32 v9, s86, v9
v_xor_b32 v9, v9, v8
v_lshlrev_b32 v9, 3, v9
v_lshl_add_u32 v9, v8, 7, v9""")
        def p1b(tis):
            o = []
            for ti in tis:
                A = vP1 + 8 * ti
                for k in range(4): o.append(f"v_cvt_pk_bf16_f32 v{A+k}, v{A+2*k}, v{A+2*k+1}")
            for n, ti in enumerate(tis):
                A = vP1 + 8 * ti
                for kt in range(2):
                    for part in range(2):
                        o.append(f"{M16} {vr(112+16*n+8*kt+4*part)}, {vr(A)}, {vr(vE1+8*part+4*kt)}, 0")
            for n, ti in enumerate(tis):
                for kt in range(2):
                    P = 112 + 16 * n + 8 * kt; Q = P + 4
                    o += [f"v_add_f32 v{P}, v{P}, v{Q+1}", f"v_sub_f32 v{P+1}, v{P+1}, v{Q}", f"v_add_f32 v{P+2}, v{P+2}, v{Q+3}", f"v_sub_f32 v{P+3}, v{P+3}, v{Q+2}"]
                    o += [f"v_cvt_pk_bf16_f32 v{P}, v{P}, v{P+1}", f"v_cvt_pk_bf16_f32 v{P+1}, v{P+2}, v{P+3}"]
                for kt in range(2):
                    o.append(tagged(f"ds_write_b64 v9, {vr(112+16*n+8*kt, 2)} offset:{SP+4096*ti+2048*kt}", "stg"))
            return o
        a(p1b([0, 1]))
        third = []
        for j in range(9):
            third.append(f"ds_read_b128 {ar(aFD[j%6])}, v14 offset:{1024*(18+j)}") if j < 6 else None
        for j in range(9):
            for t in range(2):
                third.append(f"{M16} {vr(vP1+16+4*t)}, {ar(aU[2*j+t])}, {ar(aFD[j%6])}, {'0' if j == 0 else vr(vP1+16+4*t)}")
            if j + 6 < 9: third.append(f"ds_read_b128 {ar(aFD[j%6])}, v14 offset:{1024*(18+j+6)}")
        third += p1b([2])
        a(opt("p1c", heavy1(), third))
        a(opt("w2", dbl(), [w_addr(sTAU2), w_loads(1, range(4))]))
    return p

def heavy1(): return f"s_lshr_b32 s{sT[6]}, 0x1144, s{sFJ}\ns_bitcmp1_b32 s{sT[6]}, 0"
def heavy3(): return f"s_lshr_b32 s{sT[6]}, 5, s{sQ}\ns_bitcmp1_b32 s{sT[6]}, 0"
def dbl(): return f"s_and_b32 s{sT[6]}, s{sI}, 7\ns_cmp_eq_u32 s{sT[6]}, 3"

def g1_bases():
    o = f"""v_bfe_u32 v22, v{vLANE}, 2, 2
v_lshrrev_b32 v23, 5, v{vLANE}
v_lshl_add_u32 v23, v23, 3, v22
v_bfe_u32 v24, v{vLANE}, 4, 1
v_and_b32 v25, 3, v{vLANE}
v_lshlrev_b32 v25, 3, v25
v_lshl_add_u32 v24, v24, 5, v25
v_lshl_add_u32 v{vG1H}, v23, 6, v24
v_add_u32 v{vG1H}, {WIN[0]}, v{vG1H}
v_lshl_add_u32 v23, v23, 7, v24
v_lshrrev_b32 v22, 1, v22
v_lshl_add_u32 v24, v22, 6, v23
v_xor_b32 v22, 1, v22
v_lshl_add_u32 v25, v22, 6, v23"""
    for n in range(2):
        for k in range(3): o += f"\nv_add_u32 v{vG1[n][k]}, {WIN[k]}, v{24+n}"
    return o

def g2_bases():
    t = [34, 35, 36, 37]
    o = f"""v_bfe_u32 v{t[0]}, v{vLANE}, 2, 2
v_bfe_u32 v{t[1]}, v{vLANE}, 4, 1
v_lshrrev_b32 v{t[2]}, 5, v{vLANE}
v_lshl_add_u32 v{t[2]}, v{t[2]}, 2, v{t[0]}
v_lshl_add_u32 v{t[2]}, v{t[1]}, 4, v{t[2]}
v_lshrrev_b32 v{t[0]}, 1, v{t[0]}
v_lshl_add_u32 v{t[0]}, v{t[1]}, 1, v{t[0]}
v_and_b32 v{t[3]}, 3, v{vLANE}
v_lshlrev_b32 v{t[3]}, 3, v{t[3]}
v_lshl_add_u32 v38, v{t[2]}, 6, v{t[3]}
v_lshl_add_u32 v39, v{t[2]}, 7, v{t[3]}"""
    for n in range(4):
        o += f"\nv_xor_b32 v{t[2]}, {n}, v{t[0]}\nv_lshl_add_u32 v{t[2]}, v{t[2]}, 5, v39"
        for k in range(3): o += f"\nv_add_u32 v{vG2[n][k]}, {WIN[k]}, v{t[2]}"
    for n in range(2):
        o += f"\nv_xor_b32 v{t[2]}, {n}, v{t[1]}\nv_lshl_add_u32 v{t[2]}, v{t[2]}, 5, v38"
        for k in range(2): o += f"\nv_add_u32 v{vG2H[n][k]}, {WIN[k]}, v{t[2]}"
    o += f"\nv_add_u32 v{vGDW2}, {WIN[2]}, v{vL16}\nv_add_u32 v{vGDW1}, {WIN[1]}, v{vL16}"
    return o

def stage_tr_store(nrd, sp, rowshift, gbase_s, tag, tmp, rows_per_wave):
    a, g = tmp, tmp + 1
    setup = f"""v_lshrrev_b32 v{g}, 4, v{vLANE}
s_mul_i32 s{sT[7]}, s{sW}, {rows_per_wave}
v_add_u32 v{g}, s{sT[7]}, v{g}
v_and_b32 v{a}, 15, v{vLANE}
v_lshlrev_b32 v{tmp+2}, {rowshift}, v{g}
v_lshl_add_u32 v{tmp+2}, v{a}, 3, v{tmp+2}"""
    addr = []
    for i in range(nrd):
        addr.append(f"v_add_u32 v{tmp+3+i}, {4*i}, v{g}\nv_and_b32 v0, 15, v{tmp+3+i}\nv_xor_b32 v0, v0, v{a}\nv_lshlrev_b32 v0, 3, v0\nv_lshl_add_u32 v{tmp+3+i}, v{tmp+3+i}, 7, v0")
    return setup, addr

def p2_block(rnd):
    o = []; Z = vZ[rnd]; WR, WI = vWR[rnd], vWI[rnd]; mo, me, ms, ad = vPT, vPT + 1, vPT + 2, vPT + 3
    zs = lambda k: vZS[k >> 2] + (k & 3)
    o.append(f"""v_and_b32 v{me}, 1, v{vLANE}
v_mul_u32_u24 v{mo}, 0x8000, v{me}
v_lshl_or_b32 v{mo}, v{mo}, 16, v{mo}
v_xor_b32 v{me}, 0x80008000, v{mo}
v_and_b32 v{ms}, 0x80000000, v{me}""")
    for k in range(8): o.append(f"v_xor_b32_dpp v{zs(k)}, v{Z+k}, v{mo} {DPPSW}")
    sh = []
    for k in range(16): sh += [f"v_lshlrev_b32 v{WR+k}, 16, v{WR+k}", f"v_lshl_add_u32 v{WI+k}, v{WI+k}, 16, v{ms}"]
    cs = lambda part, j, ks: ar(aCS + 4 * (8 * part + 2 * j + ks))
    for ks in range(2):
        for part in range(2):
            for j in range(4):
                src = vr(Z + 4 * ks) if part == 0 else vr(vZS[ks])
                o.append(f"{M16} {vr(vZA[j])}, {cs(part, j, ks)}, {src}, {'0' if ks + part == 0 else vr(vZA[j])}")
                o += sh[:2]; sh = sh[2:]
    o.append(f"""v_and_b32 v{ad+1}, 15, v{vLANE}
v_lshrrev_b32 v{ad}, 4, v{vLANE}
s_lshl_b32 s{sT[7]}, s{sW}, 2
v_add_u32 v{ad}, s{sT[7]}, v{ad}
v_xor_b32 v{ad}, v{ad}, v{ad+1}
v_lshlrev_b32 v{ad}, 3, v{ad}
v_lshl_add_u32 v{ad}, v{ad+1}, 7, v{ad}""")
    for j in range(4):
        for r in range(4): o.append(f"v_mul_f32 v{WR+4*j+r}, v{vZA[j]+r}, v{WR+4*j+r}")
        for r in range(4): o.append(f"v_fmac_f32_dpp v{WR+4*j+r}, v{vZA[j]+r}, v{WI+4*j+r} {DPPSW}")
    for k in range(8): o.append(f"v_cvt_pk_bf16_f32 v{Z+k}, v{WR+2*k}, v{WR+2*k+1}")
    for k in range(8): o.append(f"v_xor_b32_dpp v{zs(k)}, v{Z+k}, v{me} {DPPSW}")
    for ks in range(2):
        for part in range(2):
            for j in range(4):
                src = vr(Z + 4 * ks) if part == 0 else vr(vZS[ks])
                o.append(f"{M16} {vr(vZA[j])}, {src}, {cs(part, j, ks)}, {'0' if ks + part == 0 else vr(vZA[j])}")
    for j in range(4):
        o += [f"v_cvt_pk_bf16_f32 v{WR+2*j}, v{vZA[j]}, v{vZA[j]+1}", f"v_cvt_pk_bf16_f32 v{WR+2*j+1}, v{vZA[j]+2}, v{vZA[j]+3}"]
    for j in range(4):
        o.append(tagged(f"ds_write_b64 v{ad}, {vr(WR+2*j, 2)} offset:{SP+8192*rnd+2048*j}", "stg2"))
    return o

vY1 = 40
def p3a_block(kis):
    o = []; tmp = 64
    taus = [(ki, h) for ki in kis for h in range(2)]
    def mf(n):
        ki, h = taus[n]; P = tmp + 16 * (n % 3)
        return [f"{M16} {vr(P+8*t+4*part)}, {ar(aT2+4*(2*ki+h))}, {ar(aE3+8*part+4*t)}, 0" for t in range(2) for part in range(2)]
    def fin(n):
        ki, h = taus[n]; r = []
        for t in range(2):
            P = tmp + 16 * (n % 3) + 8 * t; Q = P + 4
            r += [f"v_sub_f32 v{P}, v{P}, v{Q+1}", f"v_add_f32 v{P+1}, v{P+1}, v{Q}", f"v_sub_f32 v{P+2}, v{P+2}, v{Q+3}", f"v_add_f32 v{P+3}, v{P+3}, v{Q+2}"]
        for t in range(2):
            P = tmp + 16 * (n % 3) + 8 * t; Y = vY1 + 8 * ki + 4 * t + 2 * h
            r += [f"v_cvt_pk_bf16_f32 v{Y}, v{P}, v{P+1}", f"v_cvt_pk_bf16_f32 v{Y+1}, v{P+2}, v{P+3}"]
        return r
    for n in range(len(taus) + 2):
        m = mf(n) if n < len(taus) else []
        f = fin(n - 2) if n >= 2 else []
        for k in range(4):
            if m: o.append(m[k])
            o += f[3 * k:3 * k + 3]
    return o

def main_stream(c):
    S = Stream()
    tr = lambda base, off: (lambda b: None)
    def rd2(regs, addr0, step):
        def mk(b):
            r = []
            for u in range(2):
                w, off = win(addr0 + step * u)
                r.append(f"ds_read_b64_tr_b16 a[{b+2*u}:{b+2*u+1}], v{regs[w]} offset:{off}")
            return r
        return mk
    bars = {}
    for ps in range(9):
        S.mark(f"p{ps}")
        A = vr(ACC1(ps), 16)
        for ks in range(36):
            if ps < 8:
                beta, n = ps >> 1, ps & 1
                f = S.add_frag(rd2(vG1[n], SLOT[2 * (beta & 1) + ks // 18] + 2048 * (ks % 18), 512), None if beta == 0 else f"E{beta-1}")
            else:
                f = S.add_frag(rd2([vG1H], SLOT[0] + 1024 * ks, 256), "E3")
            S.add((lambda A, ks: lambda fr: f"{M32} {A}, {fr}, {ar(4*ks)}, {'0' if ks == 0 else A}")(A, ks), f)
        if ps % 2 == 1 or ps == 8: bars[f"E{ps//2 if ps < 8 else 4}"] = len(S.g) - 4
    def g2(name, slot, items, bar_in, bar_out):
        S.mark(name)
        for kind, off, tile, bop, first in items:
            n = tile % 4 if tile < 16 else tile - 16
            if kind == "F": mk = rd2(vG2[n], SLOT[slot] + off, 1024)
            elif kind == "H": mk = rd2(vG2H[n], SLOT[slot] + off, 512)
            else: mk = (lambda o: lambda b: [f"ds_read_b128 {ar(b)}, v{vGDW2} offset:{o}"])(SLOT[slot] + off - WIN[2])
            f = S.add_frag(mk, bar_in)
            for t in range(2):
                A = vr(ACC2(tile, t))
                S.add((lambda A, B, first: lambda fr: f"{M16} {A}, {fr}, {B}, {'0' if first else A}")(A, bop(t), first), f)
        if bar_out: bars[bar_out] = len(S.g) - 8
    own = lambda k: (lambda t: vr(Hreg(k) + 4 * t))
    par = lambda k: (lambda t: ar(aHP + 8 * k + 4 * t))
    for beta in range(4):
        g2(f"A{beta}", (1 + beta) % 4, [("F", 4096 * k, 4 * beta + n, own(k), k == 0) for k in range(7) for n in range(4)], f"E{4+beta}", f"E{5+beta}")
    g2("L", 1, [("F", 4096 * (2 * beta + k), 4 * beta + n, own(7 + k), False) for k in range(2) for beta in range(4) for n in range(4)], "E8", "E9")
    g2("HA", 2, [("H", 2048 * k, 16 + n, own(k), k == 0) for k in range(9) for n in range(2)], "E9", "E10" if c.spectral else "E11")
    if c.spectral:
        g2("GD", 3, [("G", 1024 * (18 * ki + tile), tile, (lambda ki: lambda t: vr(vY1 + 8 * ki + 4 * t))(ki), False) for ki in range(2) for tile in range(18)], "E10", "E11")
    for beta in range(4):
        g2(f"B{beta}", beta, [("F", 4096 * k, 4 * beta + n, par(k), False) for k in range(9) for n in range(4)], f"E{11+beta}", f"E{12+beta}")
    g2("HB", 0, [("H", 2048 * k, 16 + n, par(k), False) for k in range(9) for n in range(2)], "E15", None)
    S.mark("end")
    mk = S.marks; NG = len(S.g); G2 = mk["A0"]

    vm = []
    def dma(lds, text, tag, lo, hi): vm.append([lo, hi, f"s_add_u32 m0, s{sM0}, {lds}", tagged(text, tag)])
    def spread(items, lo, hi):
        n = len(items)
        for i, (lds, text, tag) in enumerate(items):
            dma(lds, text, tag, lo + (i * (hi - lo)) // n, hi)
    def w1blk(beta):
        return [(SLOT[2 * (beta & 1) + h] + 4096 * i - 128 * beta,
                 f"buffer_load_dwordx4 v{vDW1F}, {srd(SW1)}, s{sW1T+9*h+i} offen offset:{128*beta} lds", f"blk{beta}") for h in range(2) for i in range(9)]
    def w2full(slot, pieces, tag):
        return [(SLOT[slot] + 4096 * p - 128 * beta, f"buffer_load_dwordx4 v{vDW2F}, {srd(SW2)}, s{sW2T+k} offen offset:{128*beta} lds", tag) for p, (k, beta) in enumerate(pieces)]
    sHT = sW1T
    spread(w1blk(1), 0, 48); spread(w1blk(2), bars["E0"] + 1, bars["E0"] + 52); spread(w1blk(3), bars["E1"] + 1, bars["E1"] + 52)
    spread([(SLOT[0] + 4096 * i, f"buffer_load_dwordx4 v{vDW1H}, {srd(SW1)}, s{sHT+i} offen lds", "half") for i in range(9)], bars["E2"] + 2, bars["E2"] + 30)
    spread(w2full(1, [(k, 0) for k in range(7)], "A0"), bars["E2"] + 30, bars["E2"] + 54)
    spread(w2full(2, [(k, 1) for k in range(7)], "A1"), bars["E3"] + 1, bars["E3"] + 20)
    spread(w2full(3, [(k, 2) for k in range(7)], "A2"), bars["E3"] + 20, G2 - 2)
    spread(w2full(0, [(k, 3) for k in range(7)], "A3"), G2 + 40, G2 + 110)
    spread(w2full(1, [(7 + k, beta) for beta in range(4) for k in range(2)], "L"), G2 + 112, G2 + 156)
    def spread_half(slot, treg, tag, lo, hi):
        for i in range(5):
            m0 = f"s_add_u32 m0, s{sM0}, {SLOT[slot]+4096*i}" if i < 4 else f"s_add_u32 m0, s{treg+5}, {SLOT[slot]}"
            vm.append([lo + (i * (hi - lo)) // 5, hi, m0, tagged(f"buffer_load_dwordx4 v{vDW2H}, {srd(SW2)}, s{treg+i} offen lds", tag)])
    def half_table(treg, src):
        o = f"s_add_u32 s{sT[8]}, s{sM0}, 16384\ns_add_u32 s{sT[9]}, s{sM0}, 12288\ns_cmp_ge_u32 s{sW}, 2"
        for i in range(4): o += f"\ns_cselect_b32 s{treg+i}, s{src+2*i+1}, s{src+2*i}"
        o += f"\ns_cselect_b32 s{treg+4}, s{src+7}, s{src+8}\ns_cselect_b32 s{treg+5}, s{sT[9]}, s{sT[8]}"
        return o
    spread_half(2, sW1T + 0, "M", G2 + 158, G2 + 182)
    sGD = sW1T + 14
    lin = lambda slot, off, n, goff, tag: [(SLOT[slot] + off + 4096 * i, i, tag, goff) for i in range(n)]
    if c.spectral:
        for i in range(9):
            vm.append([G2 + 184 + 4 * i, G2 + 236, f"s_add_u32 m0, s{sM0}, {SLOT[3]+4096*i}\ns_add_u32 s{sT[11]}, s{sGD}, {4096*i}",
                       tagged(f"buffer_load_dwordx4 v{vL16}, {srd(SWS)}, s{sT[11]} offen sc1 lds", "GD")])
    eB2 = "E11"
    spread(w2full(0, [(9 + k, 0) for k in range(9)], "B0"), bars["E8"] + 10, bars["E9"] - 2)
    spread(w2full(1, [(9 + k, 1) for k in range(9)], "B1"), bars["E9"] + 2, bars["E11"] - 4)
    spread(w2full(2, [(9 + k, 2) for k in range(9)], "B2"), bars["E11"] + 2, bars["E11"] + 44)
    spread(w2full(3, [(9 + k, 3) for k in range(9)], "B3"), bars["E11"] + 46, bars["E12"] + 30)
    spread_half(0, sW1T + 6, "HB", bars["E12"] + 34, bars["E13"] - 4)

    NP = 72
    E = lambda P, s: vE[2 * (P % 3) + s]
    T = lambda P, s: ACC1(P // 8) + 2 * (P % 8) + s
    def iteration(Pn, P1, P2):
        ex = lambda s: I(f"v_exp_f32 v{E(Pn, s)}, v{T(Pn, s)}") if Pn is not None else None
        ad = lambda s: I(f"v_add_f32 v{E(P1, s)}, 1.0, v{E(P1, s)}") if P1 is not None else None
        rc = lambda s: I(f"v_rcp_f32 v{E(P1, s)}, v{E(P1, s)}") if P1 is not None else None
        mu = lambda s: I(f"v_mul_f32 v{T(P2, s)}, v{T(P2, s)}, v{E(P2, s)}") if P2 is not None else None
        g = [[ex(0), ad(0), ad(1)], [ex(1), mu(0), mu(1)], [rc(0), rc(1)]]
        return [[x for x in grp if x] for grp in g]
    def pack_ops(P):
        r = [I(f"v_cvt_pk_bf16_f32 v{Hreg(P//8)+P%8}, v{T(P, 0)}, v{T(P, 1)}")]
        if P % 8 == 7: r += [I(f"v_permlane16_swap_b32 v{Hreg(P//8)+i}, v{Hreg(P//8)+4+i}") for i in range(4)]
        return r
    extra = []
    gFHck = bars["E10" if c.spectral else "E9"] + 1; gFHld = gFHck - 36
    extra.append([gFHld, gFHld + 12, f"s_xor_b32 s{sT[11]}, s{sFH}, 4", tagged(f"buffer_load_dword v33, off, {srd(SWS)}, s{sT[11]} sc1", "fh")])
    hld = []
    for k in range(18):
        pre = f"s_add_u32 s{sT[10]}, s{sHLD}, {1024*k}" if k % 4 == 0 else None
        ld = tagged(f"buffer_load_dwordx4 {ar(aHP+4*k)}, v{vL16}, {srd(SWS)}, s{sT[10]} offen offset:{1024*(k%4)} sc1", "hld")
        if c.spectral: hld.append(flatten([pre, ld]))
        else: extra.append([gFHck + 1 + 2 * k, mk["B0"] - 2, pre, ld])
    fin = []; post = []
    for beta in range(5):
        endg = mk[f"B{beta+1}"] if beta < 3 else (mk["HB"] if beta == 3 else NG)
        for pi in ([2 * beta, 2 * beta + 1] if beta < 4 else [8]):
            for t in range(2):
                n = 2 * pi + t; tmp = 64 + 4 * (n % 12)
                cv = [I(f"v_cvt_pk_bf16_f32 v{tmp+2*h+k}, v{ACC2(2*pi+h, t)+2*k}, v{ACC2(2*pi+h, t)+2*k+1}") for h in range(2) for k in range(2)]
                st = [f"s_add_u32 s{sT[11]}, s{sPST}, {8192*n}", tagged(f"buffer_store_dwordx4 {vr(tmp)}, v{vL16}, {srd(SWS)}, s{sT[11]} offen sc1", "pst")]
                if endg >= NG: post += cv + st
                else: fin.append((endg + 3 + (n % 4) * (12 if beta < 3 else 0), cv, st))
    blocks = {}
    def block(g, body): blocks.setdefault(g, []).extend(flatten([body]))
    after = {}
    waits = {b: [] for b in bars}
    pub = {"E0": "blk1", "E1": "blk2", "E2": "blk3", "E3": "half", "E4": "A0", "E5": "A1", "E6": "A2", "E7": "A3", "E8": "L", "E9": "M",
           "E10": "GD", "E11": "B0", "E12": "B1", "E13": "B2", "E14": "B3", "E15": "HB"}
    for b in bars: waits[b].append(WAITV(pub[b]))
    block(gFHck, spin("fh", f"buffer_load_dword v33, off, {srd(SWS)}, s{sT[9]} sc1", 33))
    blocks[gFHck].insert(0, I(f"s_xor_b32 s{sT[9]}, s{sFH}, 4"))
    block(bars["E2"], f"s_cmp_ge_u32 s{sW}, 2\n" + "\n".join(f"s_cselect_b32 s{sHT+i}, s{sW1T+2*i+1}, s{sW1T+2*i}" for i in range(9)))
    block(bars["E4"], [half_table(sW1T + 0, sW2T), half_table(sW1T + 6, sW2T + 9),
                       f"s_mul_i32 s{sGD}, s{sFJ}, 55296\ns_add_u32 s{sGD}, s{sGD}, s{sM0}\ns_add_u32 s{sGD}, s{sGD}, {GD}"])
    early = flatten([g2_bases()])
    if c.spectral:
        setup, addr = stage_tr_store(2, SP, 11, None, None, 160, 8)
        t1 = flatten([setup, addr, f"s_lshl_b32 s{sT[1]}, s{sTAU0}, 16\ns_lshl_b32 s{sT[2]}, s{sMI}, 7\ns_add_u32 s{sT[1]}, s{sT[1]}, s{sT[2]}\ns_add_u32 s{sT[1]}, s{sT[1]}, {T1}"])
        def t1_tile(ti):
            rd = [f"ds_read_b64_tr_b16 {vr(168+4*ti+2*i, 2)}, v{163+i} offset:{SP+4096*ti}" for i in range(2)]
            st = []
            for i in range(2):
                st.append(f"s_add_u32 s{sT[2]}, s{sT[1]}, {65536*ti + 8192*i}")
                st.append(tagged(f"buffer_store_dwordx2 {vr(168+4*ti+2*i, 2)}, v162, {srd(SWS)}, s{sT[2]} offen sc1", "t1st"))
            return rd, st
        r0, s0 = t1_tile(0); r1, s1 = t1_tile(1); r2, s2 = t1_tile(2)
        block(3, [t1, r0, r1]); block(9, [s0]); block(12, [s1]); block(15, opt("t1c", heavy1(), [r2, s2]))
        waits["E0"] += [WAITV("t1st"), WAITV("tab")]
        after.setdefault("E0", []).extend([f"s_lshl_b32 s{sT[8]}, s{sFJ}, 7\ns_lshl_b32 s{sT[9]}, s{sMI}, 2\ns_add_u32 s{sT[8]}, s{sT[8]}, s{sT[9]}\ns_add_u32 s{sT[8]}, s{sT[8]}, {FL1}", flag_store(sT[8])])
        starts = [0, 2, 4, 7, 9, 11, 13, 16, 18, 21, 23, 25, 27, 30, 32, 34]
        cls = lambda tau: max(f for f in range(16) if starts[f] <= tau)
        nib = lambda lo: sum(cls(lo + k) << (4 * k) for k in range(8))
        sC1, sC2 = sT[3], sT[4]
        f1a = f"""s_mov_b32 s{sC1}, {nib(0)}
s_mov_b32 s{sC2}, {nib(8)}
s_cmp_lt_u32 s{sTAU1}, 16
s_cselect_b32 s{sC1}, s{sC1}, {nib(16)}
s_cselect_b32 s{sC2}, s{sC2}, {nib(24)}
s_bitcmp1_b32 s{sTAU1}, 3
s_cselect_b32 s{sC1}, s{sC2}, s{sC1}
s_and_b32 s{sC2}, s{sTAU1}, 7
s_lshl_b32 s{sC2}, s{sC2}, 2
s_lshr_b32 s{sC1}, s{sC1}, s{sC2}
s_and_b32 s{sC1}, s{sC1}, 15
s_lshr_b32 s{sC2}, s{sTAU2}, 1
s_sub_u32 s{sC2}, s{sC2}, 2
{dbl()}
s_cselect_b32 s{sC2}, s{sC2}, s{sC1}
v_mov_b32 v177, s{sFJ}
v_mov_b32 v178, s{sC1}
v_mov_b32 v179, s{sC2}
v_cmp_gt_u32 vcc, 16, v{vLANE}
v_cndmask_b32 v177, v178, v177, vcc
v_cmp_gt_u32 vcc, 32, v{vLANE}
v_cndmask_b32 v177, v179, v177, vcc
v_and_b32 v178, 15, v{vLANE}
v_lshlrev_b32 v178, 2, v178
v_lshl_add_u32 v177, v177, 7, v178
s_lshl_b32 s{sC1}, s{sC1}, 14
s_add_u32 s{sC1}, s{sC1}, {CS}"""
        block(20, f1a)
        f1ld = f"buffer_load_dword v176, v177, {srd(SWS)}, s{sT[9]} offen sc1"
        g1ld = bars["E2"] - 24; g1ck = bars["E2"] + 1
        extra.append([g1ld, g1ld + 9, f"s_movk_i32 s{sT[9]}, {FL1}", tagged(f1ld, "f1")])
        block(g1ck, [f"s_movk_i32 s{sT[9]}, {FL1}", spin("f1", f1ld, 176)])
        def zloads(rnd, tau):
            pre = f"s_lshl_b32 s{sT[5]}, s{tau}, 5\ns_lshl_b32 s{sT[7]}, s{sXCD}, 2\ns_add_u32 s{sT[5]}, s{sT[5]}, s{sT[7]}\ns_add_u32 s{sT[5]}, s{sT[5]}, s{sW}\ns_lshl_b32 s{sT[5]}, s{sT[5]}, 11\ns_add_u32 s{sT[5]}, s{sT[5]}, {T1}"
            return pre, [tagged(f"buffer_load_dwordx2 {vr(vZ[rnd]+2*k, 2)}, v{vL8}, {srd(SWS)}, s{sT[5]} offen offset:{512*k} sc1", f"z{rnd}") for k in range(4)]
        pre1, z1 = zloads(1, sTAU2); pre0, z0 = zloads(0, sTAU1)
        block(g1ck, [opt("z2", dbl(), [pre1, z1]), pre0])
        for k in range(4): extra.append([g1ck + 1 + k, g1ck + 30, None, z0[k]])
        for k in range(16):
            extra.append([g1ck + 5 + 2 * k, g1ck + 44, f"s_add_u32 s{sT[11]}, s{sC1}, {4096*(k//4)}" if k % 4 == 0 else None,
                          tagged(f"buffer_load_dwordx4 {ar(aCS+4*k)}, v{vL16}, {srd(SWS)}, s{sT[0]} offen offset:{1024*(k%4)} sc1", "cs")])
            if k % 4 == 0: extra[-1][2] = f"s_add_u32 s{sT[0]}, s{sC1}, {4096*(k//4)}"
        gP2 = bars["E3"] - 14
        block(gP2, [p2_block(0), opt("p2b", dbl(), p2_block(1))])
        waits["E3"].append(WAITL("stg2"))
        setup, addr = stage_tr_store(4, SP, 10, None, None, 160, 16)
        def t2_round(rnd, tau):
            rd = [f"ds_read_b64_tr_b16 {vr(168+8*rnd+2*i, 2)}, v{163+i} offset:{SP+8192*rnd}" for i in range(4)]
            st = [f"s_lshl_b32 s{sT[1]}, s{tau}, 16\ns_lshl_b32 s{sT[2]}, s{sXCD}, 7\ns_add_u32 s{sT[1]}, s{sT[1]}, s{sT[2]}\ns_add_u32 s{sT[1]}, s{sT[1]}, {T2}"]
            for i in range(4):
                st.append(f"s_add_u32 s{sT[2]}, s{sT[1]}, {4096*i}")
                st.append(tagged(f"buffer_store_dwordx2 {vr(168+8*rnd+2*i, 2)}, v162, {srd(SWS)}, s{sT[2]} offen sc1", "t2st"))
            return rd, st
        ra, sa = t2_round(0, sTAU1); rb_, sb = t2_round(1, sTAU2)
        block(bars["E3"] - 6, [setup, addr])
        block(bars["E3"] + 1, ra); block(bars["E3"] + 6, sa); block(bars["E3"] + 9, opt("t2b", dbl(), [rb_, sb]))
        waits["E5"].append(WAITV("t2st"))
        fl2 = lambda tau: [f"s_lshl_b32 s{sT[8]}, s{tau}, 3\ns_add_u32 s{sT[8]}, s{sT[8]}, s{sXCD}\ns_lshl_b32 s{sT[8]}, s{sT[8]}, 2\ns_add_u32 s{sT[8]}, s{sT[8]}, {FL2}", flag_store(sT[8])]
        after.setdefault("E5", []).extend([fl2(sTAU1), opt("f2b", dbl(), fl2(sTAU2))])
        f2ld = f"buffer_load_dword v9, v8, {srd(SWS)}, s{sT[9]} offen sc1"
        f2a = f"{heavy3()}\ns_cselect_b32 s{sT[7]}, 47, 31\nv_min_u32 v8, s{sT[7]}, v{vLANE}\nv_lshlrev_b32 v8, 2, v8"
        f2s = f"s_lshl_b32 s{sT[9]}, s{sKS0}, 6\ns_add_u32 s{sT[9]}, s{sT[9]}, {FL2}"
        g2ld = bars["E8"] - 30; g2ck = bars["E8"] + 1
        block(g2ld - 4, [f2a, f2s]); extra.append([g2ld, g2ld + 12, None, tagged(f2ld, "f2")])
        def t2loads(ks):
            r = []
            for k in ks:
                r.append((f"s_add_u32 s{sT[0]}, s{sT[5]}, {65536*k}", tagged(f"buffer_load_dwordx2 {ar(aT2+4*k, 2)}, v{vL8}, {srd(SWS)}, s{sT[0]} offen sc1", "t2ld")))
                r.append((None, tagged(f"buffer_load_dwordx2 {ar(aT2+4*k+2, 2)}, v{vL8}, {srd(SWS)}, s{sT[0]} offen offset:512 sc1", "t2ld")))
            return r
        gd3 = []
        for i in range(5):
            gd3.append(f"s_add_u32 m0, s{sM0}, {SLOT[2]+18432+4096*i}\ns_add_u32 s{sT[0]}, s{sGD}, {36864+4096*i}" if i < 4 else
                       f"s_add_u32 m0, s{sW1T+5}, {SLOT[2]+18432}\ns_sub_u32 s{sT[0]}, s{sW1T+5}, s{sM0}\ns_add_u32 s{sT[0]}, s{sT[0]}, s{sGD}\ns_add_u32 s{sT[0]}, s{sT[0]}, 36864")
            gd3.append(tagged(f"buffer_load_dwordx4 v{vL16}, {srd(SWS)}, s{sT[0]} offen sc1 lds", "M"))
        block(g2ck, [f2s, spin("f2", f2ld, 9),
                     f"s_lshl_b32 s{sT[5]}, s{sKS0}, 7\ns_add_u32 s{sT[5]}, s{sT[5]}, s{sB}\ns_lshl_b32 s{sT[5]}, s{sT[5]}, 10\ns_add_u32 s{sT[5]}, s{sT[5]}, {T2}",
                     opt("t2c", heavy3(), [[x for pr in t2loads([4, 5]) for x in pr if x], gd3])])
        for n, (pre, ld) in enumerate(t2loads(range(4))): extra.append([g2ck + 3 + 4 * n, g2ck + 50, pre, ld])
        g3 = []
        fr = [96 + 4 * k for k in range(8)]
        rd3 = lambda k: f"ds_read_b128 {ar(fr[k%8])}, v{vGDW1} offset:{SLOT[2]+18432+1024*k-WIN[1]}"
        g3 += [rd3(k) for k in range(7)]
        g3 += p3a_block([2])
        for k in range(18):
            for t in range(2):
                g3.append(f"{M16} {vr(ACC2(k, t))}, {ar(fr[k%8])}, {vr(vY1+16+4*t)}, {vr(ACC2(k, t))}")
                if t == 0 and k + 7 < 18: g3.append(rd3(k + 7))
        p3 = []
        for x in flatten(p3a_block([0, 1])):
            p3.append(x)
            if x.kind == "M16" and hld: p3 += hld.pop(0)
        block(mk["GD"] - 1, [hld, p3, opt("gd3", heavy3(), g3)])
        nld = f"buffer_load_dwordx4 v[12:15], v{vL16}, {srd(SWS)}, s{sT[9]} offen sc1".replace("v[12:15]", "v[10:13]")
        wg0 = f"s_cmp_eq_u32 s{sWG}, 0"
        block(mk["B1"] + 2, opt("n1", wg0, [f"s_movk_i32 s{sT[9]}, {FL2}", tagged(nld, "nl")]))
        block(mk["B2"] + 2, opt("n2", wg0, [f"s_movk_i32 s{sT[9]}, {FL2}", spin("n", nld, 10, 4), f"s_mov_b32 s{sT[8]}, 0", flag_store(sT[8])]))
    barg = set(bars.values())
    vq = sorted(vm + extra, key=lambda z: z[0])
    val = {}; vmat = {}; preat = {}; clear = set(); busy = set()
    light = [(16, x, None) for x in early]; hdone = {}
    sq = []; Pn = 0; P1 = P2 = P3 = None
    lastvm = -9
    def push_vm(it):
        k = 0
        while k < len(vq) and vq[k][0] <= it[0]: k += 1
        vq.insert(k, it)
    def took(g, cb):
        if cb is None: return
        if cb[0] == "h":
            k = cb[1]; hdone[k] = g
            for t in range(2):
                push_vm([g + 2 + 2 * t, g + 14, f"s_add_u32 s{sT[11]}, s{sHST}, {1024*(2*k+t)}",
                         tagged(f"buffer_store_dwordx4 {vr(Hreg(k)+4*t)}, v{vL16}, {srd(SWS)}, s{sT[11]} offen sc1", "hst")])
        else: push_vm([g + 2, g + 10, cb[1][0], cb[1][1]])
    def refill(g):
        nonlocal Pn, P1, P2, P3
        while len(sq) < 4:
            ready = Pn < NP and g >= 36 * (Pn // 8 + 1) + 3
            if not ready and P1 is None and P2 is None and P3 is None: return
            it = iteration(Pn if ready else None, P1, P2)
            for k, grp in enumerate(it):
                sq.extend((x, None) for x in grp)
                if k == 0 and P3 is not None:
                    o = pack_ops(P3); sq.append((o[0], None)); late4 = o[1:]
            if P3 is not None:
                sq.extend((x, ("h", P3 // 8) if n == 3 else None) for n, x in enumerate(late4))
            P3, P2, P1 = P2, P1, (Pn if ready else None)
            if ready: Pn += 1
    un = lambda x: 2 if x.kind == "T" else 1
    def take(g, cap, nmax):
        r = []
        while len(r) < nmax:
            refill(g)
            if sq and un(sq[0][0]) <= cap: x, cb = sq.pop(0)
            elif not sq and light and light[0][0] <= g and cap >= 1: _, x, cb = light.pop(0)
            else: break
            r.append(x); cap -= un(x); took(g, cb)
        return r
    cnt = 0
    for g in range(NG):
        while fin and fin[0][0] <= g:
            _, cv, st = fin.pop(0)
            light += [(g, x, ("p", st) if n == 3 else None) for n, x in enumerate(cv)]
        refill(g)
        due = vq and vq[0][0] <= g and g not in barg
        if g < G2:
            behind = Pn < NP and g > 36 * (Pn // 8 + 1) + 3 + 4 * (Pn % 8) + 8
            if due:
                it = vq.pop(0); vmat[g] = it; preat[g] = it[2]
                val[g] = take(g, 4 if behind else 2, 3 if behind else 2)
            else: val[g] = take(g, 4, 3)
            continue
        if g in busy: continue
        work = bool(sq) or (light and light[0][0] <= g)
        if due and (not work or vq[0][1] - g < 3 * sum(1 for z in vq if z[1] <= vq[0][1]) + 1):
            it = vq[0]; x = g + (2 if it[2] else 1)
            if x < NG and not (barg & set(range(g, x + 1))):
                vq.pop(0); vmat[x] = it; clear.add(x); busy.update(range(g, x + 1))
                if it[2]:
                    if g in blocks or g + 1 in blocks: preat[x] = it[2]
                    else: preat[g] = it[2]
                continue
        cnt += 1
        if cnt % 8 == 0 or g in barg: continue
        val[g] = take(g, 2, 2) if sq else take(g, 1, 1)
    assert not sq and Pn == NP and P1 is None and P2 is None and P3 is None
    rest = []
    for _, x, cb in light:
        rest.append(x)
        if cb and cb[0] == "p": rest += flatten([cb[1]])
    for it in vq: rest = flatten([it[2], it[3]]) + rest
    post = rest + post
    assert hdone[6] < mk["A0"] + 46 and hdone[7] < mk["L"] - 2 and hdone[8] < mk["L"] + 30, hdone
    hlast = max(g for g, it in vmat.items() if it[3].tag == "hst")
    eH = min((b for b in bars if bars[b] > hlast + 36), key=lambda b: bars[b])
    waits[eH].append(WAITV("hst"))
    after.setdefault(eH, []).extend([f"s_mov_b32 s{sT[8]}, s{sFH}", flag_store(sT[8])])

    S.build(aRING, bars, clear=clear)
    for b, gi in bars.items():
        lastf = max(k for k, f in enumerate(S.frags) if f["at"] < gi)
        S.g[gi].pre += flatten([WAITR([S.frags[lastf]["regs"]]), waits[b], "s_barrier"])
        if b in after: S.g[gi].blocks = flatten([after[b]]) + S.g[gi].blocks
    for gi, it in vmat.items(): S.g[gi].vm.append(it[3])
    for gi, pre in preat.items():
        if pre: S.g[gi].pre += flatten([pre])
    for gi, l in val.items(): S.g[gi].val += l
    for gi, l in blocks.items(): S.g[gi].blocks += l
    S.place_waits()
    free = {"blk2": "E0", "blk3": "E1", "half": "E2", "A0": "E2", "A1": "E3", "A2": "E3", "A3": "E4", "L": "E5", "M": "E6", "GD": "E7",
            "B0": "E8", "B1": "E9", "B2": "E11", "B3": "E11", "HB": "E12"}
    inv = {v: k for k, v in pub.items()}
    for g, it in vmat.items():
        tg = it[3].tag
        if tg in inv and inv[tg] in bars: assert g < bars[inv[tg]], (tg, g)
        if tg in free: assert g > bars[free[tg]], (tg, g)
    order = sorted(bars.values())
    for f in S.frags:
        nb = [x for x in order if f["after"] is None or x > bars[f["after"]]]
        if nb: assert f["at"] < nb[0], f
    assert all(x not in early for g, l in val.items() if g >= 39 for x in l)
    late = {it[3].tag: (g, it[1]) for g, it in sorted(vmat.items()) if g > it[1]}
    return S.emit() + flatten(post), dict(marks=mk, bars=bars, eH=eH, hdone=hdone, late=late, S=S)

sFH = 83
def main_kernel(c):
    p = [prologue(c), layernorm(c), g1_bases(),
         f"s_lshl_b32 s{sFH}, s{sMI}, 3\ns_add_u32 s{sFH}, s{sFH}, s{sQ}\ns_lshl_b32 s{sFH}, s{sFH}, 7\ns_lshl_b32 s86, s{sR}, 2\ns_add_u32 s{sFH}, s{sFH}, s86\ns_add_u32 s{sFH}, s{sFH}, {FLH}",
         "s_waitcnt lgkmcnt(0)", WAITV("blk0"), "s_barrier"]
    body, info = main_stream(c)
    p += [body, "s_waitcnt vmcnt(0)", LABEL("L_exit"), "s_endpgm"]
    log = []
    prog = pad_hazards(resolve_waits(flatten(p), log), log)
    return prog, log, info

def reduce_kernel(c):
    p = []; a = p.append
    a("s_cmp_ge_u32 s2, 576\ns_cbranch_scc1 L_rexit")
    a("s_load_dwordx2 s[20:21], s[0:1], 0\ns_load_dwordx2 s[22:23], s[0:1], 48\ns_load_dwordx2 s[24:25], s[0:1], 64")
    a("v_lshrrev_b32 v8, 6, v0\nv_and_b32 v1, 63, v0\nv_readfirstlane_b32 s26, v8\nv_lshlrev_b32 v2, 4, v1")
    a("s_lshl_b32 s27, s2, 2\ns_add_u32 s27, s27, s26")
    a(f"s_mul_i32 s28, s27, 3641\ns_lshr_b32 s28, s28, 16\ns_mul_i32 s29, s28, 18\ns_sub_u32 s29, s27, s29")
    a("s_and_b32 s30, s28, 3\ns_bfe_u32 s31, s28, 0x10002\ns_lshr_b32 s32, s28, 3")
    a("s_and_b32 s33, s29, 1\ns_lshr_b32 s34, s29, 1")
    a("s_lshl_b32 s35, s34, 5\ns_mul_i32 s36, s31, 320\ns_add_u32 s36, s36, s35\ns_lshl_b32 s37, s31, 5\ns_add_u32 s37, s37, s35\ns_cmp_lt_u32 s34, 8\ns_cselect_b32 s36, s36, s37")
    a("s_lshl_b32 s37, s33, 10\ns_lshl_b32 s38, s32, 2\ns_add_u32 s37, s37, s38\ns_add_u32 s37, s37, s30\ns_mul_i32 s37, s37, 1152\ns_lshl_b32 s36, s36, 1\ns_add_u32 s36, s36, s37")
    a("v_and_b32 v3, 15, v1\nv_mul_u32_u24 v3, 73728, v3\nv_lshrrev_b32 v4, 4, v1\nv_lshl_add_u32 v3, v4, 4, v3")
    a(f"s_lshl_b32 s27, s27, 13\ns_add_u32 s27, s27, {PB}\ns_add_u32 s39, s27, 4096")
    a("s_waitcnt lgkmcnt(0)")
    a(mk_srd(4, 20, 2359296)); a(mk_srd(8, 22, 2359296)); a(mk_srd(12, 24, WS_END))
    for q in range(8):
        a(f"buffer_load_dwordx4 {vr(16+4*q)}, v2, s[12:15], s{27 if q < 4 else 39} offen offset:{1024*(q%4)}")
    a("buffer_load_dwordx4 v[8:11], v3, s[4:7], s36 offen")
    a("s_mov_b32 s40, 0x00003f80\ns_mov_b32 s41, 0x3f800000\ns_mov_b32 s42, 0xffff0000")
    for k in range(4): a(f"v_lshlrev_b32 v{48+2*k}, 16, v{16+k}\nv_and_b32 v{49+2*k}, s42, v{16+k}")
    for q in range(1, 8):
        for k in range(4): a(f"v_dot2c_f32_bf16 v{48+2*k}, s40, v{16+4*q+k}\nv_dot2c_f32_bf16 v{49+2*k}, s41, v{16+4*q+k}")
    for k in range(4): a(f"v_permlane32_swap_b32 v{48+k}, v{52+k}")
    for k in range(4): a(f"v_permlane16_swap_b32 v{48+k}, v{52+k}")
    a(f"s_mov_b32 s43, {fhex(-1/LOG2E)}")
    for k in range(4):
        a(f"v_lshlrev_b32 v12, 16, v{8+k}\nv_and_b32 v13, s42, v{8+k}\nv_fma_f32 v12, v{48+2*k}, s43, v12\nv_fma_f32 v13, v{49+2*k}, s43, v13\nv_cvt_pk_bf16_f32 v{56+k}, v12, v13")
    a("buffer_store_dwordx4 v[56:59], v3, s[8:11], s36 offen")
    a(["s_waitcnt vmcnt(0)", LABEL("L_rexit"), "s_endpgm"])
    return pad_hazards(resolve_waits(flatten(p)))

def descriptor(name, vgpr, accum, sgpr):
    return f""".amdhsa_kernel {name}
  .amdhsa_next_free_vgpr {vgpr}
  .amdhsa_next_free_sgpr {sgpr}
  .amdhsa_accum_offset {accum}
  .amdhsa_group_segment_fixed_size 0
  .amdhsa_kernarg_size 72
  .amdhsa_user_sgpr_count 2
  .amdhsa_user_sgpr_kernarg_segment_ptr 1
  .amdhsa_system_sgpr_workgroup_id_x 1
.end_amdhsa_kernel
"""

def generate(c):
    prog, log, info = main_kernel(c)
    red = reduce_kernel(c)
    k1, k2 = NAME + "_kernel", "reduce_kernel"
    s = f"""; Fused LayerNorm + 2-D spectral filter + SiLU feed-forward, generated by gen/gen.py.
; @launch kernel={k1} grid=(256,1,1) block=(256,1,1) lds=163840
; @launch kernel={k2} grid=(576,1,1) block=(256,1,1) lds=0
.amdgcn_target "amdgcn-amd-amdhsa--gfx950"
.text
.globl {k1}
.p2align 8
.type {k1},@function
{k1}:
{render(prog)}
.globl {k2}
.p2align 8
.type {k2},@function
{k2}:
{render(red)}
.section .rodata,"a"
.p2align 6
{descriptor(k1, 512, 256, 102)}.p2align 6
{descriptor(k2, 64, 64, 48)}"""
    return s, log, info, prog

if __name__ == "__main__":
    c = Cfg()
    if "nospec" in sys.argv: c.spectral = False
    s, log, info, prog = generate(c)
    out = sys.argv[1]
    open(out, "w").write(s)
    from collections import Counter
    print("instructions", len(prog), Counter(i.kind for i in prog).most_common())
    print(info["marks"], info["bars"], info["eH"], info["hdone"], info["late"])
    print(len(log), "log lines"); open("gen.log", "w").write("\n".join(log))
```

```python
import re

_REG = re.compile(r"^(-|\|)?([vas])(?:(\d+)|\[(\d+):(\d+)\])\|?$")

def regs_of(tok):
    tok = tok.strip()
    if tok in ("vcc", "vcc_lo"): return {("s", "vcc")}
    if tok == "exec": return {("s", "exec")}
    if tok == "m0": return {("s", "m0")}
    m = _REG.match(tok)
    if not m: return set()
    k = m.group(2)
    if m.group(3) is not None: return {(k, int(m.group(3)))}
    return {(k, i) for i in range(int(m.group(4)), int(m.group(5)) + 1)}

TRANS = ("v_exp_f32", "v_rcp_f32", "v_sqrt_f32", "v_rsq_f32", "v_cos_f32", "v_sin_f32", "v_log_f32")
NODEST = ("s_cmp", "s_cbranch", "s_branch", "s_waitcnt", "s_barrier", "s_nop", "s_endpgm", "s_sleep", "s_setprio", "s_bitcmp")

SCC_R = ("s_cselect", "s_addc", "s_subb", "s_cbranch_scc", "s_cmov")
SCC_KEEP = ("s_mul_i32", "s_mov", "s_cselect", "s_nop", "s_waitcnt", "s_barrier", "s_getpc", "s_load", "s_cbranch", "s_branch", "s_endpgm", "s_sleep", "s_setprio")

class I:
    __slots__ = ("t", "op", "kind", "rd", "wr", "tag", "blk", "ops", "arg")
    def __init__(self, t, tag=None, kind=None, arg=None):
        self.t = t; self.tag = tag; self.blk = None; self.arg = arg
        self.rd = set(); self.wr = set(); self.ops = []
        if kind is not None:
            self.kind = kind; self.op = kind; return
        parts = t.split(None, 1)
        op = self.op = parts[0]
        rest = parts[1] if len(parts) > 1 else ""
        toks = [x.strip() for x in rest.split(",")] if rest else []
        if toks:
            last = toks[-1].split()
            toks[-1] = last[0] if last else ""
            mods = last[1:]
        else:
            mods = []
        R = [regs_of(x) for x in toks]; self.ops = R
        allr = lambda l: set().union(*l) if l else set()
        if op.startswith("v_mfma"):
            self.kind = "M32" if "32x32" in op else "M16"
            self.wr = R[0]; self.rd = allr(R[1:])
        elif op.startswith("v_"):
            self.kind = "T" if op.startswith(TRANS) else "V"
            if "swap" in op: self.wr = R[0] | R[1]; self.rd = R[0] | R[1]
            elif op.startswith(("v_fmac", "v_dot2c")): self.wr = R[0]; self.rd = allr(R)
            elif "_co_" in op: self.wr = R[0] | R[1]; self.rd = allr(R[2:])
            else: self.wr = R[0]; self.rd = allr(R[1:])
        elif op.startswith("ds_read"):
            self.kind = "DR"; self.wr = R[0]; self.rd = allr(R[1:])
        elif op.startswith("ds_write"):
            self.kind = "DW"; self.rd = allr(R)
        elif op.startswith(("buffer_load", "global_load")):
            if "lds" in mods:
                self.kind = "DMA"; self.rd = allr(R) | {("s", "m0")}
            else:
                self.kind = "VL"; self.wr = R[0]; self.rd = allr(R[1:])
                if "d16" in op: self.rd |= R[0]
        elif op.startswith(("buffer_store", "global_store")):
            self.kind = "VS"; self.rd = allr(R)
        elif op.startswith("s_load"):
            self.kind = "SL"; self.wr = R[0]; self.rd = allr(R[1:])
        elif op.startswith(NODEST):
            self.kind = "S"; self.rd = allr(R)
            if "vcc" in op: self.rd |= {("s", "vcc")}
        elif op.startswith("s_"):
            self.kind = "S"; self.wr = R[0]; self.rd = allr(R[1:])
        else:
            raise ValueError("unknown instruction: " + t)
        if self.kind == "S":
            if op.startswith(SCC_R): self.rd = self.rd | {("s", "scc")}
            if not op.startswith(SCC_KEEP): self.wr = self.wr | {("s", "scc")}
    def __repr__(self): return self.t

def WAITV(tag): return I(f"; waitv {tag}", kind="WAITV", arg=tag)
def WAITL(tag): return I(f"; waitl {tag}", kind="WAITL", arg=tag)
def WAITR(regs): return I("; waitr", kind="WAITR", arg=set().union(*[regs_of(r) for r in regs]))
def RAW(text): return I(text, kind="RAW")
def LABEL(name): return I(name + ":", kind="LABEL")
def OPT_BEGIN(name): return I("; opt begin " + name, kind="OB", arg=name)
def OPT_END(name): return I("; opt end " + name, kind="OE", arg=name)

def flatten(x):
    out = []
    for e in x:
        if e is None: continue
        if isinstance(e, (list, tuple)): out += flatten(e)
        elif isinstance(e, str):
            out += [I(l.strip()) for l in e.split("\n") if l.strip()]
        else: out.append(e)
    return out

def resolve_waits(prog, log=None):
    out = []; vq = []; lq = []; blk = None; auto = 0
    def need(q, idx):
        return sum(1 for e in q[idx + 1:] if e[2] is None or e[2] == blk)
    def emit(v=None, l=None):
        s = []
        if v is not None: s.append(f"vmcnt({min(v, 63)})")
        if l is not None: s.append(f"lgkmcnt({min(l, 15)})")
        w = I("s_waitcnt " + " ".join(s)); w.blk = blk; out.append(w)
    def settle(q, idx):
        if blk is None: del q[:idx + 1]
        else:
            for e in q[:idx + 1]: e[3].add(blk)
    def last(q, pred):
        r = -1
        for i, e in enumerate(q):
            if blk is not None and blk in e[3]: continue
            if pred(e): r = i
        return r
    for ins in prog:
        k = ins.kind
        if k == "OB": blk = ins.arg; out.append(ins); continue
        if k == "OE":
            b = blk; blk = None
            vq[:] = [e for e in vq if not (e[2] == b and b in e[3])]
            lq[:] = [e for e in lq if not (e[2] == b and b in e[3])]
            out.append(ins); continue
        ins.blk = blk
        if k == "WAITV":
            i = last(vq, lambda e: e[1] == ins.arg)
            if i >= 0: emit(v=need(vq, i)); settle(vq, i)
            continue
        if k == "WAITL":
            i = last(lq, lambda e: e[1] == ins.arg)
            if i >= 0: emit(l=need(lq, i)); settle(lq, i)
            continue
        touch = ins.arg if k == "WAITR" else (ins.rd | ins.wr)
        iv = last(vq, lambda e: e[0] & touch); il = last(lq, lambda e: e[0] & touch)
        if iv >= 0 or il >= 0:
            emit(need(vq, iv) if iv >= 0 else None, need(lq, il) if il >= 0 else None)
            if iv >= 0: settle(vq, iv)
            if il >= 0: settle(lq, il)
            if k != "WAITR":
                auto += 1
                if log is not None: log.append(f"auto wait before: {ins.t}")
        if k == "WAITR": continue
        if ins.op == "s_waitcnt":
            m = re.search(r"vmcnt\((\d+)\)", ins.t)
            if m and int(m.group(1)) == 0 and vq: settle(vq, len(vq) - 1)
            m = re.search(r"lgkmcnt\((\d+)\)", ins.t)
            if m and int(m.group(1)) == 0 and lq: settle(lq, len(lq) - 1)
        if k in ("VL", "VS", "DMA"): vq.append([set(ins.wr), ins.tag, blk, set()])
        if k in ("DR", "DW"): lq.append([set(ins.wr), ins.tag, blk, set()])
        out.append(ins)
    return out

def _states(ins):
    if ins.kind in ("LABEL", "OB", "OE"): return 0
    if ins.op == "s_nop": return int(ins.t.split()[1]) + 1
    return 1

def _need(p, c):
    n = 0
    pk, ck = p.kind, c.kind
    cM = ck in ("M16", "M32"); cV = ck in ("V", "T"); cMem = ck in ("DR", "DW", "VL", "VS", "DMA")
    if pk in ("V", "T"):
        vw = {r for r in p.wr if r[0] != "s"}; sw = {r for r in p.wr if r[0] == "s"}
        if cM and vw & c.rd: n = max(n, 2)
        if cV and vw & c.rd:
            if "dpp" in c.op and vw & c.ops[1]: n = max(n, 2)
            if "permlane" in c.op: n = max(n, 2)
            if "readfirstlane" in c.op or "readlane" in c.op: n = max(n, 1)
            if pk == "T" and ck == "V": n = max(n, 1)
        if pk == "T" and cMem and vw & c.rd: n = max(n, 1)
        if p.op.startswith("v_dot"):
            if c.op == p.op:
                if vw & (c.ops[1] | c.ops[2]): n = max(n, 3)
            elif vw & (c.rd | c.wr): n = max(n, 3)
        if sw:
            if cV and sw & c.rd: n = max(n, 2)
            if cMem and sw & c.rd: n = max(n, 5)
            if ck in ("S", "SL") and sw & c.rd: n = max(n, 1)
    if pk in ("M16", "M32"):
        big = pk == "M32"
        if cM:
            srcc = c.ops[3]; ab = c.ops[1] | c.ops[2]
            if p.wr & ab: n = max(n, 12 if big else 8)
            if p.wr & srcc and not (p.wr == srcc and pk == ck): n = max(n, 10 if big else 6)
            if p.wr & c.wr and not (p.wr == srcc and pk == ck): n = max(n, 10 if big else 6)
        elif cV or cMem:
            if p.wr & (c.rd | c.wr): n = max(n, 12 if big else 8)
            if cV and p.ops[3] & c.wr: n = max(n, 7 if big else 3)
    if pk == "S" and ("s", "m0") in p.wr and ck == "DMA": n = max(n, 1)
    if pk == "S" and ("s", "exec") in p.wr and (cM or "dpp" in c.op): n = max(n, 0)
    if pk == "VS" and ("x4" in p.op or "x3" in p.op) and p.ops[0] & c.wr: n = max(n, 2 if cV else 1)
    if pk == "DW" and "b128" in p.op and p.ops[1] & c.wr: n = max(n, 1)
    return n

def pad_hazards(prog, log=None):
    blocks = sorted({i.blk for i in prog if i.blk is not None})
    variants = [set(blocks), set()] + [{b} for b in blocks] + [set(blocks) - {b} for b in blocks]
    while True:
        add = {}
        for on in variants:
            seq = [i for i, x in enumerate(prog) if x.blk is None or x.blk in on]
            for a, ci in enumerate(seq):
                c = prog[ci]
                if c.kind in ("LABEL", "OB", "OE", "RAW"): continue
                dist = 0
                for b in range(a - 1, max(a - 24, -1), -1):
                    p = prog[seq[b]]
                    n = _need(p, c) if p.kind not in ("LABEL", "OB", "OE", "RAW") else 0
                    if n > dist: add[ci] = max(add.get(ci, 0), n - dist)
                    dist += _states(p)
                    if dist >= 12: break
        if not add: return prog
        first = min(add)
        new = []
        for i, x in enumerate(prog):
            if i in add and all(not (i - 14 < j < i) for j in add if j != i):
                w = I(f"s_nop {add[i]-1}"); w.blk = x.blk; new.append(w)
                if log is not None: log.append(f"nop {add[i]} before: {x.t}")
            new.append(x)
        prog = new

def render(prog):
    return "\n".join(("" if i.kind == "LABEL" else "  ") + i.t for i in prog)


CHAINS = []
def chain(x):
    l = flatten([x]); CHAINS.append(l); return l

def verify_chains(prog):
    blocks = {i.blk for i in prog if i.blk is not None}
    for on in (blocks, set()):
        seen = {}; last = {}
        for x in prog:
            if x.blk is not None and x.blk not in on: continue
            seen[id(x)] = {r: last.get(r) for r in x.rd}
            for r in x.wr: last[r] = x
        for ch in CHAINS:
            w = {}
            for x in ch:
                if id(x) in seen:
                    for r in x.rd:
                        if r in w and seen[id(x)][r] is not w[r]:
                            raise AssertionError(f"{r} read by '{x.t}' now comes from '{seen[id(x)][r]}' instead of '{w[r]}'")
                for r in x.wr: w[r] = x
```

```python
from asmlib import *

class Gap:
    __slots__ = ("m", "pre", "rd", "vm", "val", "post", "blocks", "big")
    def __init__(self, m):
        self.m = m; self.big = m.kind == "M32"
        self.pre = []; self.rd = []; self.vm = []; self.val = []; self.post = []; self.blocks = []
    def units(self):
        return sum(2 if x.kind == "T" else 1 for x in self.val)
    def fits(self, ins):
        u = 2 if ins.kind == "T" else 1
        if self.big:
            cap = 2 if self.vm else 4
            if len(self.rd) > 2: cap -= 2
            return self.units() + u <= cap and len(self.val) < 3
        if self.vm or self.val or self.post or self.pre: return False
        if u == 2: return len(self.rd) == 0
        return len(self.rd) <= 1
    def fits_s(self):
        if self.big: return not self.pre
        return not (self.vm or self.val or self.post or self.pre) and len(self.rd) <= 1
    def emit(self):
        return [self.m] + self.pre + self.rd + self.vm + self.val + self.post + self.blocks

class Stream:
    def __init__(self):
        self.g = []
        self.frag = []
        self.frags = []
        self.marks = {}
    def mark(self, name): self.marks[name] = len(self.g)
    def add_frag(self, mk, after):
        self.frags.append(dict(mk=mk, first=None, last=None, after=after)); return len(self.frags) - 1
    def add(self, mk, frag):
        i = len(self.g); self.g.append(None); self.frag.append((mk, frag))
        f = self.frags[frag]
        if f["first"] is None: f["first"] = i
        f["last"] = i
    def build(self, ring, bars, lead32=6, lead16=12, clear=()):
        n = len(ring)
        for k, f in enumerate(self.frags):
            f["base"] = ring[k % n]; f["regs"] = f"a[{f['base']}:{f['base']+3}]"
        for i, (mk, fr) in enumerate(self.frag):
            self.g[i] = Gap(I(mk(self.frags[fr]["regs"])))
        self.head = []
        pend = []
        for k, f in enumerate(self.frags):
            for j, t in enumerate(f["mk"](f["base"])):
                pend.append((k, I(t)))
        ptr = 0; clear = set(clear)
        def allowed(k, gi):
            f = self.frags[k]
            if k >= n and self.frags[k - n]["last"] > gi: return False
            if f["after"] is not None and bars[f["after"]] > gi: return False
            return True
        while ptr < len(pend) and self.frags[pend[ptr][0]]["first"] < lead32 and allowed(pend[ptr][0], -1):
            self.head.append(pend[ptr][1]); self.frags[pend[ptr][0]]["at"] = -1; ptr += 1
        for gi, g in enumerate(self.g):
            lead = lead32 if g.big else lead16
            base = 2 if g.big else 1
            nxt_clear = (gi + 1) in clear
            while ptr < len(pend):
                k = pend[ptr][0]; f = self.frags[k]
                if not allowed(k, gi): break
                slack = f["first"] - gi
                cap = base
                if not g.big and nxt_clear: cap = 2
                if slack < lead - (0 if g.big else 1): cap = base + 1
                if gi in clear: cap = 0 if slack > 6 else 1
                if slack <= (2 if g.big else 4): cap = 4
                if slack > lead + (0 if g.big else (1 if nxt_clear else 0)) or len(g.rd) >= cap: break
                g.rd.append(pend[ptr][1]); f["at"] = gi; ptr += 1
        assert ptr == len(pend)
        for k, f in enumerate(self.frags):
            assert f["at"] < f["first"], (k, f)
    def place_waits(self, age32=3, age16=6):
        cov = -1; n = len(self.g)
        def ok(g):
            if g.big: return not g.pre
            return not g.val and len(g.rd) <= 1 and len(g.pre) <= (0 if g.vm else 1) and not any(x.op == "s_barrier" for x in g.pre)
        for gi in range(-1, n - 1):
            big = gi < 0 or self.g[gi].big
            must = self.frag[gi + 1][1] > cov
            if not must:
                look = 2 if big else 4
                nxt = [j for j in range(gi + 1, min(gi + look, n - 1)) if self.frag[j + 1][1] > cov]
                if not nxt or not ok(self.g[gi]): continue
                if any(ok(self.g[j]) for j in range(gi + 1, nxt[0] + 1)): continue
            age = age32 if big else age16
            k = self.frag[gi + 1][1] if must else cov
            while k + 1 < len(self.frags) and self.frags[k + 1]["at"] <= gi - age: k += 1
            if k <= cov: continue
            w = WAITR([self.frags[k]["regs"]])
            if gi < 0: self.head.append(w)
            elif self.frags[k]["at"] == gi: self.g[gi].post.append(w)
            else: self.g[gi].pre.insert(0, w)
            cov = k
    def put_s(self, ins, lo, hi):
        for gi in range(hi, lo - 1, -1):
            if self.g[gi].fits_s():
                self.g[gi].pre += flatten([ins]); return gi
        self.g[hi].pre += flatten([ins]); return hi
    def put_v(self, ops, lo, hi):
        ops = flatten(ops); where = []; gi = lo; n = len(ops)
        for j, x in enumerate(ops):
            gi = max(gi, lo + (j * (hi - lo)) // n - 2)
            while gi < hi - 1 and not self.g[gi].fits(x): gi += 1
            self.g[gi].val.append(x); where.append(gi)
        return where
    def emit(self):
        out = list(self.head)
        for g in self.g: out += g.emit()
        return out
```

```python
import sys, struct
from asmlib import *
from sched import *

NAME = "parallel_sum__spectral_gfnet__dense_activation_silu__prompt"
LOG2E = 1.4426950408889634
def fhex(x): return "0x%08x" % struct.unpack("<I", struct.pack("<f", x))[0]

FL1, FL2, FLH = 0x1000, 0x2000, 0x3000
CS, GD, T1, T2, HB, PB, WS_END = 0x10000, 0x50000, 0x200000, 0x480000, 0x800000, 0x1A00000, 0x2C00000
OOB = 0x40000000
SP = 0
SLOT = [16384 + 36864 * k for k in range(4)]
WIN = [16384, 65536, 114688]
def win(addr):
    w = 0 if addr < WIN[1] else (1 if addr < WIN[2] else 2)
    return w, addr - WIN[w]
SX, SW1, SW2, SWS, SWR, SWI = 4, 8, 12, 16, 20, 24
sW, sMI, sFJ, sQ, sR, sB, sNON, sROT, sM0, sWG, sI, sXCD = 28, 29, 30, 31, 32, 33, 34, 35, 36, 37, 38, 39
sW1T, sW2T = 40, 58
sPR0, sKS0, sTAU1, sTAU2, sHST, sHLD, sPST, sFH, sSGN = 76, 77, 78, 79, 80, 81, 82, 83, 84
sT = list(range(86, 101))
sPR1 = sT[12]; sKAP2 = 85
PR1 = f"s_cmp_eq_u32 s{sFJ}, 8\ns_cselect_b32 s{sPR1}, 8, 17"
def srd(n): return f"s[{n}:{n+3}]"
vLANE, vL16, vL8, vDW1F, vDW1H, vDW2F, vDW2H = 1, 2, 3, 4, 5, 6, 7
vG1 = [[8, 9, 10], [11, 12, 13]]; vG1H = 14
vG2 = [[15 + 3 * n + k for k in range(3)] for n in range(4)]
vG2H = [[27, 28], [29, 30]]; vGDW2, vGDW1, vSGN = 31, 32, 33
vE = list(range(34, 40))
H0 = 40
def Hreg(k): return H0 + 8 * k
def RAWX(t, j): return 112 + 4 * (18 * t + j)
def ACC1(p): return 112 + 16 * (p % 3)
def ACC2(tile, t): return 248 - 8 * tile + 4 * t
vE1 = 40
vWR = [184, 200]; vWI = [220, 236]; vZ = [160, 168]; vZS = [216, 252]; vZA = [96, 100, 104, 108]; vPT = 176
aRING = [144 + 4 * k for k in range(8)]
aE3, aCS, aHP, aT2 = 240, 176, 0, 72
def vr(b, n=4): return f"v[{b}:{b+n-1}]"
def ar(b, n=4): return f"a[{b}:{b+n-1}]"
M16 = "v_mfma_f32_16x16x32_bf16"; M32 = "v_mfma_f32_32x32x16_bf16"
DPPSW = "quad_perm:[1,0,3,2] row_mask:0xf bank_mask:0xf"

def tagged(text, tag): return I(text, tag=tag)

def mk_srd(n, lo, size):
    return f"s_mov_b32 s{n}, s{lo}\ns_mov_b32 s{n+1}, s{lo+1}\ns_mov_b32 s{n+2}, {size}\ns_mov_b32 s{n+3}, 0x20000"

def cos8(dst, tmp, base, step, ks, sin_dst=None):
    o = []
    for half in range(2):
        for e in range(4):
            k = ks[4 * half + e]
            o.append(f"v_fmamk_f32 v{tmp+e}, v{step}, {fhex(k)}, v{base}" if k else f"v_mov_b32 v{tmp+e}, v{base}")
        if sin_dst is not None:
            for e in range(4): o.append(f"v_sin_f32 v{tmp+4+e}, v{tmp+e}")
        for e in range(4): o.append(f"v_cos_f32 v{tmp+e}, v{tmp+e}")
        if sin_dst is not None:
            for e in range(2): o.append(f"v_cvt_pk_bf16_f32 v{sin_dst+2*half+e}, v{tmp+4+2*e}, v{tmp+5+2*e}")
        for e in range(2): o.append(f"v_cvt_pk_bf16_f32 v{dst+2*half+e}, v{tmp+2*e}, v{tmp+1+2*e}")
    return o

def mod576(dst, t):
    return [f"v_mul_hi_u32 v{t}, v{dst}, s{sT[14]}", f"v_mul_u32_u24 v{t}, 576, v{t}", f"v_sub_u32 v{dst}, v{dst}, v{t}"]

def col_off(dst, tau):
    return f"s_cmp_lt_u32 s{tau}, 18\ns_cselect_b32 s{dst}, 2, -287\ns_lshl_b32 s{sT[13]}, s{tau}, 4\ns_add_i32 s{dst}, s{dst}, s{sT[13]}"

def spin(name, load, reg, nreg=1):
    cmpv = lambda: "\n".join([f"v_cmp_ne_u32 vcc, s{sNON}, v{reg}"] +
                             [f"v_cmp_ne_u32 s[{sT[10]}:{sT[10]+1}], s{sNON}, v{reg+k}\ns_or_b64 vcc, vcc, s[{sT[10]}:{sT[10]+1}]" for k in range(1, nreg)])
    return [WAITR([vr(reg, nreg) if nreg > 1 else f"v{reg}"]),
            RAW(f"""{cmpv()}
  s_cbranch_vccz L_{name}_ok
  s_mov_b32 s{sT[12]}, 0
L_{name}_spin:
  s_sleep 1
  {load}
  s_waitcnt vmcnt(0)
  {cmpv()}
  s_cbranch_vccz L_{name}_ok
  s_add_u32 s{sT[12]}, s{sT[12]}, 1
  s_cmp_lt_u32 s{sT[12]}, 0x8000
  s_cbranch_scc1 L_{name}_spin
L_{name}_ok:
  s_nop 1""")]

def opt(name, cond, body):
    return [cond, f"s_cbranch_scc0 L_{name}", OPT_BEGIN(name), body, OPT_END(name), LABEL("L_" + name)]

def flag_store(off_s, tag="flag"):
    return [f"s_cmp_eq_u32 s{sW}, 0\ns_cselect_b32 s{off_s}, s{off_s}, {OOB}\nv_mov_b32 v0, s{sNON}",
            tagged(f"buffer_store_dword v0, off, {srd(SWS)}, s{off_s} sc1", tag)]

STREG = [101, 0, 1, 4, 5, 6, 7, 20, 21, 22, 23, 24, 25, 26, 27]
def stamp(c, name, fine=False):
    if not c.stamps or (fine and not c.pro): return []
    if c.pro: STREG[:] = [101, 0, 1] + list(range(60, 76))
    k = len(c.names); c.names.append(name)
    return [RAW(f"s_waitcnt lgkmcnt(0)\n  {c.clk} s[2:3]\n  s_waitcnt lgkmcnt(0)\n  s_mov_b32 s{STREG[k]}, s2")]
def stamp_out(c):
    if not c.stamps: return []
    t = "\n  ".join(f"v_writelane_b32 v8, s{STREG[k]}, {k}" for k in range(len(c.names)))
    return [RAW(f"""{t}
  s_lshl_b32 s2, s{sWG}, 10
  s_lshl_b32 s3, s{sW}, 8
  s_add_u32 s2, s2, s3
  s_add_u32 s2, s2, {WS_END}
  v_lshlrev_b32 v0, 2, v{vLANE}
  s_mov_b32 s{SWS+2}, {WS_END + 0x40000}
  buffer_store_dword v8, v0, {srd(SWS)}, s2 offen""")]
class Cfg:
    spectral = True
    stamps = False
    dense = True
    xfirst = 3
    pro = 0
    xstart = 180
    xstep = 55
    pf2at = 54
    pfa = 5
    f1at = 176
    x1lag = 24
    f2pub = 'E3'
    f2at = 250
    wspan = 30
    lagok = 3
    lead32 = 7
    bar32 = 5
    nover = 0
    e3at = 100
    hlag = 36
    pflav = 'sc1'
    nearly = 6
    nlate = 4
    dma_from = 2
    e3early = 1
    xslow = 8
    xfast = 14
    prefetch = True
    names = []
    clk = 's_memrealtime'
    stamp_at = []

def dma_w1(beta, half, i, tag):
    lds = SLOT[2 * (beta & 1) + half] + 4096 * i - 128 * beta
    return [f"s_add_u32 m0, s{sM0}, {lds}",
            tagged(f"buffer_load_dwordx4 v{vDW1F}, {srd(SW1)}, s{sW1T+9*half+i} offen offset:{128*beta} lds", tag)]

vXO = [104, 105, 106, 107]
vXR = [108, 109, 110, 111]
vFD = [80 + 4 * n for n in range(5)]; vFD2 = [56, 60, 64, 68, 100]
vSQ = [72, 73, 74, 75, 76, 77, 78, 79]
aSUM, aSEL, aONE = 144, 160, 168
aFD = [176 + 4 * k for k in range(8)]
vCM, vD, vLO, vHI, vRS = 8, [24, 56], 80, 96, 72

def x_line(L):
    o = [f"s_add_u32 m0, s{sT[1]}, {4096*L}", f"s_add_u32 s{sT[2]}, s{sT[2]}, 128\ns_cmp_eq_u32 s{sT[2]}, s{sT[3]}\ns_cselect_b32 s{sT[2]}, s{sT[4]}, s{sT[2]}" if L else "s_nop 0"]
    return o + [tagged(f"buffer_load_dwordx4 v{vXO[rg]}, {srd(SX)}, s{sT[2]} offen offset:{1024*rg} lds", f"x{L}") for rg in range(4)]

def fd_frags(pair, regs):
    o = [f"s_cmp_lt_u32 s{pair}, 9\ns_cselect_b32 s{sT[5]}, 2, -287\ns_lshl_b32 s{sT[6]}, s{pair}, 5\ns_add_i32 s{sT[5]}, s{sT[5]}, s{sT[6]}",
         f"s_lshl_b32 s{sT[6]}, s{sROT}, 1\ns_add_u32 s{sT[6]}, s{sT[6]}, s{sW}\ns_lshl_b32 s{sT[6]}, s{sT[6]}, 4",
         f"v_and_b32 v16, 30, v{vLANE}\nv_add_u32 v16, s{sT[5]}, v16\nv_lshrrev_b32 v17, 5, v{vLANE}\nv_lshl_add_u32 v17, v17, 3, s{sT[6]}\nv_mul_u32_u24 v17, v16, v17",
         mod576(17, 19), "v_lshlrev_b32 v18, 6, v16", mod576(18, 19),
         f"v_and_b32 v19, 1, v{vLANE}\nv_cvt_f32_u32 v19, v19\nv_mul_f32 v19, 0x3e800000, v19",
         f"v_cvt_f32_u32 v16, v16\nv_cvt_f32_u32 v17, v17\nv_cvt_f32_u32 v18, v18\nv_mul_f32 v16, {fhex(1/576)}, v16\nv_fmamk_f32 v17, v17, {fhex(1/576)}, v19\nv_mul_f32 v18, {fhex(1/576)}, v18"]
    chunks = [o]
    for n in range(5):
        chunks.append([cos8(regs[n], 22, 17, 16, range(8)), "v_add_f32 v17, v17, v18" if n < 4 else None])
    return chunks
def fd_write(regs, base):
    o = [f"s_add_u32 s{sT[5]}, s{sM0}, {base}\nv_add_u32 v0, s{sT[5]}, v{vL16}\ns_cmp_ge_u32 s{sW}, 2\ns_cselect_b32 s{sT[6]}, {SLOT[3]+16384-base-16384}, 0\nv_add_u32 v75, s{sT[6]}, v0"]
    for n in range(5): o.append(tagged(f"ds_write_b128 v{0 if n < 4 else 75}, {vr(regs[n])} offset:{4096*n}", "fd"))
    return o

def weave(ops, inserts, when):
    def safe(i):
        for x in ops[i:]:
            if x.op.startswith(SCC_R): return False
            if x.kind == "S" and not x.op.startswith(SCC_KEEP): return True
        return True
    out = []; t = 0; k = 0; depth = 0
    for i, x in enumerate(ops):
        if x.kind == "MARK":
            while k < len(inserts) and inserts[k][0] <= x.arg: out += inserts[k][1]; k += 1
            continue
        if k < len(inserts) and depth == 0 and t >= when[k] and x.kind not in ("OB", "OE", "LABEL") and safe(i):
            out += inserts[k][1]; k += 1
        out.append(x)
        if x.kind == "OB": depth += 1
        if x.kind == "LABEL": depth = 0
        if depth == 0: t += 2 if x.kind == "T" else 1
    for ins in inserts[k:]: out += ins[1]
    return out

def late_setup():
    u0, u1, u2 = sT[8], sT[9], sT[13]
    t = [f"""v_lshrrev_b32 v34, 3, v{vLANE}
s_lshl_b32 s{u0}, s{sW}, 3
v_add_u32 v35, s{u0}, v34
v_bfe_u32 v34, v34, 1, 1
v_bfe_u32 v36, v35, 4, 1
v_lshl_add_u32 v36, v36, 1, v34
v_lshlrev_b32 v36, 1, v36
v_and_b32 v34, 7, v{vLANE}
v_xor_b32 v36, v36, v34
v_mul_u32_u24 v{vDW2F}, 1152, v35
v_lshl_add_u32 v{vDW2F}, v36, 4, v{vDW2F}
s_mul_i32 s{u0}, s{sR}, 640
v_add_u32 v{vDW2F}, s{u0}, v{vDW2F}
v_lshrrev_b32 v34, 2, v{vLANE}
v_and_b32 v36, 3, v{vLANE}
s_and_b32 s{u2}, s{sW}, 1
s_lshl_b32 s{u1}, s{u2}, 4
v_add_u32 v35, s{u1}, v34
v_mul_u32_u24 v{vDW1H}, 9216, v35
v_lshl_add_u32 v{vDW1H}, v36, 4, v{vDW1H}
s_mul_i32 s{u0}, s{sFJ}, 576
s_lshl_b32 s{u1}, s{sR}, 9
s_sub_u32 s{u0}, s{u0}, s{u1}
s_add_u32 s{u0}, s{u0}, 512
v_add_u32 v{vDW1H}, s{u0}, v{vDW1H}
s_lshl_b32 s{u2}, s{u2}, 1
v_xor_b32 v36, s{u2}, v36
v_mul_u32_u24 v{vDW2H}, 1152, v35
v_lshl_add_u32 v{vDW2H}, v36, 4, v{vDW2H}
s_lshl_b32 s{u0}, s{sR}, 6
s_add_u32 s{u0}, s{u0}, 512
v_add_u32 v{vDW2H}, s{u0}, v{vDW2H}"""]
    sc = []
    for side in range(2):
        sc.append(f"s_xor_b32 s{u0}, s{sFJ}, {side}\ns_and_b32 s{u1}, s{u0}, 1\ns_mul_i32 s{u0}, s{u0}, 288\ns_lshl_b32 s{u2}, s{u1}, 5\ns_add_u32 s{u2}, s{u2}, s{u0}\ns_mul_i32 s{u2}, s{u2}, 1152")
        for k in range(8): sc.append(f"s_add_u32 s{sW2T+9*side+k}, s{u2}, {36864*k}")
        sc.append(f"s_lshl_b32 s{u1}, s{u1}, 8\ns_sub_u32 s{u0}, s{u0}, s{u1}\ns_add_u32 s{u0}, s{u0}, 256\ns_mul_i32 s{sW2T+9*side+8}, s{u0}, 1152")
    sc.append(f"s_lshl_b32 s{u0}, s{sMI}, 4\ns_add_u32 s{u1}, s{u0}, s{sFJ}\ns_xor_b32 s{u1}, s{u1}, 1\ns_lshl_b32 s{u1}, s{u1}, 2\ns_add_u32 s{u1}, s{u1}, s{sW}\ns_mul_i32 s{u1}, s{u1}, 18432\ns_add_u32 s{sHLD}, s{u1}, {HB}")
    sc.append(f"s_lshl_b32 s{u0}, s{sMI}, 1\ns_add_u32 s{u0}, s{u0}, s{sR}\ns_lshl_b32 s{u0}, s{u0}, 2\ns_add_u32 s{u0}, s{u0}, s{sW}\ns_mul_i32 s{u0}, s{u0}, {18*8192}\ns_lshl_b32 s{u1}, s{sQ}, 10\ns_add_u32 s{u0}, s{u0}, s{u1}\ns_add_u32 s{sPST}, s{u0}, {PB}")
    sc.append(f"s_lshl_b32 s{sFH}, s{sMI}, 3\ns_add_u32 s{sFH}, s{sFH}, s{sQ}\ns_lshl_b32 s{sFH}, s{sFH}, 7\ns_lshl_b32 s{u0}, s{sR}, 2\ns_add_u32 s{sFH}, s{sFH}, s{u0}\ns_add_u32 s{sFH}, s{sFH}, {FLH}")
    hst = f"s_lshl_b32 s{sHST}, s{sMI}, 4\ns_add_u32 s{sHST}, s{sHST}, s{sFJ}\ns_lshl_b32 s{sHST}, s{sHST}, 2\ns_add_u32 s{sHST}, s{sHST}, s{sW}\ns_mul_i32 s{sHST}, s{sHST}, 18432\ns_add_u32 s{sHST}, s{sHST}, {HB}"
    return flatten(t), flatten(sc), flatten([hst])

def e3_table(tmp, g, i, a0, a1, a2):
    K16 = [16 * (e >> 2) + (e & 3) for e in range(8)]
    o = [f"v_and_b32 v{i}, 15, v{vLANE}\nv_lshrrev_b32 v{g}, 4, v{vLANE}\nv_lshlrev_b32 v{a0}, 2, v{g}\nv_cvt_f32_u32 v{a0}, v{a0}"]
    for t in range(2):
        o.append(f"v_add_u32 v{a1}, {16*t}, v{i}\nv_lshlrev_b32 v{a1}, 6, v{a1}\nv_add_u32 v{a1}, s{sB}, v{a1}\nv_cvt_f32_u32 v{a1}, v{a1}\nv_mul_f32 v{a1}, {fhex(1/2048)}, v{a1}\nv_mul_f32 v{a2}, v{a1}, v{a0}")
        o.append(cos8(tmp + 8, tmp, a2, a1, K16, sin_dst=tmp + 12))
        for e in range(4): o.append(f"v_accvgpr_write_b32 a{aE3+4*t+e}, v{tmp+8+e}\nv_accvgpr_write_b32 a{aE3+8+4*t+e}, v{tmp+12+e}")
    return flatten(o)

def prologue(c):
    p = []; a = p.append
    a(f"s_cmp_ge_u32 s2, 256\ns_cbranch_scc1 L_exit\ns_mov_b32 s{sWG}, s2"); a(stamp(c, "start"))
    a(f"s_load_dwordx4 s[88:91], s[0:1], 0\ns_load_dwordx2 s[92:93], s[0:1], 16\ns_load_dwordx4 s[96:99], s[0:1], 32\ns_load_dwordx2 s[94:95], s[0:1], 64")
    a(f"v_lshrrev_b32 v8, 6, v0\nv_and_b32 v{vLANE}, 63, v0\nv_readfirstlane_b32 s{sW}, v8")
    a(f"s_and_b32 s{sXCD}, s{sWG}, 7\ns_lshr_b32 s{sI}, s{sWG}, 3")
    a("s_getpc_b64 s[86:87]"); a(LABEL("L_pc"))
    a(f"""s_lshl_b32 s100, s{sI}, 11
v_lshrrev_b32 v17, 4, v0
v_lshl_add_u32 v17, v17, 7, s100
v_min_u32 v17, L_exit-L_pc, v17
v_mov_b32 v19, s87
v_add_co_u32 v18, vcc, s86, v17
v_addc_co_u32 v19, vcc, 0, v19, vcc""")
    a(tagged("global_load_dword a208, v[18:19], off", "pf"))
    a(f"s_lshr_b32 s{sFJ}, s{sXCD}, 1\ns_lshl_b32 s{sFJ}, s{sFJ}, 2\ns_and_b32 s86, s{sI}, 3\ns_add_u32 s{sFJ}, s{sFJ}, s86")
    a(f"s_and_b32 s{sMI}, s{sXCD}, 1\ns_lshl_b32 s{sMI}, s{sMI}, 3\ns_lshr_b32 s87, s{sI}, 2\ns_add_u32 s{sMI}, s{sMI}, s87")
    a(f"s_lshr_b32 s{sQ}, s{sFJ}, 1\ns_and_b32 s{sR}, s{sFJ}, 1\ns_lshl_b32 s{sB}, s{sMI}, 2\ns_add_u32 s{sB}, s{sB}, s{sW}")
    a(f"s_mul_i32 s{sROT}, s86, 5\ns_and_b32 s{sROT}, s{sROT}, 0xfe")
    a(f"s_lshl_b32 s{sM0}, s{sW}, 10")
    a(f"v_lshlrev_b32 v{vL16}, 4, v{vLANE}\nv_lshlrev_b32 v{vL8}, 3, v{vLANE}")
    a(f"""v_lshrrev_b32 v12, 3, v{vLANE}
v_and_b32 v14, 7, v{vLANE}
v_lshrrev_b32 v15, 1, v12
v_xor_b32 v15, v15, v14
v_mul_u32_u24 v16, 73728, v12
v_lshl_add_u32 v{vXO[0]}, v15, 4, v16
v_xor_b32 v15, 4, v15
v_lshl_add_u32 v{vXO[1]}, v15, 4, v16
v_add_u32 v{vXO[2]}, {2*588800}, v{vXO[0]}
v_add_u32 v{vXO[3]}, {3*588800}, v{vXO[1]}
v_add_u32 v{vXO[1]}, 588800, v{vXO[1]}""")
    a("s_waitcnt lgkmcnt(0)")
    a(mk_srd(SX, 88, 2359296)); a(mk_srd(SWR, 90, 1183744)); a(mk_srd(SWI, 92, 1183744))
    a(f"s_mul_i32 s{sT[1]}, s{sW}, 36864\ns_add_u32 s{sT[1]}, s{sT[1]}, {SLOT[0]}")
    a(f"s_mul_i32 s{sT[4]}, s{sB}, 1152\ns_add_u32 s{sT[3]}, s{sT[4]}, 1152\ns_lshl_b32 s{sT[2]}, s{sROT}, 6\ns_add_u32 s{sT[2]}, s{sT[2]}, s{sT[4]}")
    for L in range(c.xfirst): a(x_line(L))
    a(mk_srd(SWS, 94, WS_END))
    a(mk_srd(SW1, 96, 5308416)); a(mk_srd(SW2, 98, 5308416))
    a(f"s_mov_b32 s{sT[14]}, {(2**32 + 575)//576}")
    a(stamp(c, "issued"))
    ch = []
    ch.append(f"""s_lshl_b32 s{sT[5]}, s{sW}, 3
v_add_u32 v13, s{sT[5]}, v12
v_bfe_u32 v15, v12, 1, 1
v_lshlrev_b32 v16, 2, v15
v_xor_b32 v16, v16, v14
v_mul_u32_u24 v{vDW1F}, 9216, v13
v_lshl_add_u32 v{vDW1F}, v16, 4, v{vDW1F}
s_mul_i32 s{sT[5]}, s{sFJ}, 576
s_lshl_b32 s{sT[6]}, s{sR}, 6
s_add_u32 s{sT[6]}, s{sT[6]}, s{sT[5]}
v_add_u32 v{vDW1F}, s{sT[6]}, v{vDW1F}
v_and_b32 v12, 31, v{vLANE}
v_lshrrev_b32 v13, 5, v{vLANE}
v_bfe_u32 v14, v12, 1, 3
v_xor_b32 v14, v14, v13
v_lshlrev_b32 v15, 7, v12
v_add_u32 v15, s{sT[1]}, v15""" + "".join(f"\nv_xor_b32 v16, {2*k}, v14\nv_lshl_add_u32 v{vXR[k]}, v16, 4, v15" for k in range(4)))
    sel = f"""v_and_b32 v14, 1, v{vLANE}
v_lshlrev_b32 v14, 4, v14
v_mov_b32 v15, 0x3f80
v_lshlrev_b32 v14, v14, v15
v_bfe_u32 v15, v{vLANE}, 2, 1
v_cmp_eq_u32 vcc, v15, v13
v_bfe_u32 v15, v{vLANE}, 1, 1
v_cndmask_b32 v14, 0, v14, vcc
v_bfe_u32 v16, v{vLANE}, 3, 2
v_lshl_add_u32 v15, v16, 1, v15
s_mov_b32 s{sSGN}, 0x3f803f80"""
    for j in range(8): sel += f"\nv_cmp_eq_u32 vcc, {j}, v15\nv_mov_b32 v{vSQ[j]}, 0\ns_nop 0\nv_cndmask_b32 v16, 0, v14, vcc\nv_accvgpr_write_b32 a{aSEL+j}, v16"
    ch.append(sel)
    t = f"s_mul_i32 s{sW1T}, s{sROT}, 294912"
    for j in range(1, 18): t += f"\ns_add_u32 s{sW1T+j}, s{sW1T+j-1}, 294912\ns_cmp_eq_u32 s{sW1T+j}, 5308416\ns_cselect_b32 s{sW1T+j}, 0, s{sW1T+j}"
    ch.append(t)
    u0 = sT[5]
    t = [f"s_cmp_ge_u32 s{sFJ}, 8\ns_addc_u32 s{sPR0}, s{sFJ}, 0\ns_lshl_b32 s{sKS0}, s{sQ}, 1"]
    for th in (0, 2): t.append(f"s_cmp_gt_u32 s{sQ}, {th}\ns_addc_u32 s{sKS0}, s{sKS0}, 0")
    t.append(f"s_mov_b32 s{sTAU1}, s{sI}\ns_lshr_b32 s{sTAU2}, s{sMI}, 3\ns_cmp_eq_u32 s{sFJ}, 13\ns_cselect_b32 s{u0}, 34, 32\ns_add_u32 s{sTAU2}, s{sTAU2}, s{u0}\ns_and_b32 s{sKAP2}, s{sMI}, 7")
    ch.append(t)
    ch.append(late_setup() if not c.pro else late_setup()[0])
    if c.spectral: ch += tables(c)
    ch.append(prefetch_setup(c))
    def stats(L):
        rd = [WAITV(f"x{L}")] + [f"ds_read_b128 {vr(112+16*L+4*k)}, v{vXR[k]} offset:{4096*L}" for k in range(4)]
        st = []
        for k in range(4):
            r = 112 + 16 * L + 4 * k
            if k == 0: st.append(WAITR([vr(r + 12)]))
            for i in range(4): st += [f"v_dot2c_f32_bf16 v{vSQ[i]}, v{r+i}, v{r+i}", f"v_dot2c_f32_bf16 v{vSQ[4+i]}, s{sSGN}, v{r+i}"]
        return rd, st
    work = flatten(ch)
    ntab = sum(2 if x.kind == "T" else 1 for x in work if x.kind not in ("OB", "OE", "LABEL")) - (170 if c.spectral else 0)
    prev = None; tail = []
    for L in range(9):
        rd, st = stats(L)
        tail += flatten([I(f"; line {L}", kind="MARK", arg=L), rd, prev]); prev = st
    tail += flatten(prev)
    rest = []
    for L in range(c.xfirst, 9):
        x = flatten(x_line(L)); rest += [(L, x[:-3]), (L, [x[-3]]), (L, [x[-2]]), (L, [x[-1]])]
    when = []; t = c.xstart
    for k in range(len(rest)):
        when.append(t); t += c.xstep if k < c.xslow else c.xfast
    rest.append((9, [tagged(f"buffer_load_dword a215, off, {srd(SWS)}, 0 sc1", "non")])); when.append(t)
    a(weave(work + flatten(stamp(c, "tables")) + tail, rest, when))
    a(stamp(c, "xland"))
    return p

vPF1, vPFW, sPFH, sPFW = 8, 10, sT[10], sT[11]
def prefetch_setup(c):
    u, v = sPFH, sPFW
    return f"""s_and_b32 s{u}, s{sMI}, 7
s_lshl_b32 s{u}, s{u}, 2
s_add_u32 s{u}, s{u}, s{sW}
s_mul_i32 s{u}, s{u}, {18*9216}
s_mul_i32 s{v}, s{sFJ}, 576
s_add_u32 s{u}, s{u}, s{v}
v_min_u32 v{vPF1}, 17, v{vLANE}
v_mul_u32_u24 v{vPF1}, 9216, v{vPF1}
v_add_u32 v{vPF1}, s{u}, v{vPF1}
s_lshl_b32 s{u}, s{sI}, 6
s_lshl_b32 s{v}, s{sXCD}, 2
s_add_u32 s{u}, s{u}, s{v}
s_mul_i32 s{u}, s{u}, 578
s_mul_i32 s{v}, s{sW}, 640
s_add_u32 s{v}, s{u}, s{v}
v_min_u32 v{vPFW}, 9, v{vLANE}
v_mul_u32_u24 v9, 52, v{vPFW}
v_lshrrev_b32 v9, 8, v9
v_mul_u32_u24 v9, {18496-640}, v9
v_lshl_add_u32 v{vPFW}, v{vPFW}, 7, v9
s_lshl_b32 s{u}, s{sR}, 6"""
def pf_w1(beta):
    if beta < 4: return [tagged(f"buffer_load_dword a{209+beta}, v104, {srd(SW1)}, s{sPFH} offen offset:{128*beta}", "pf")]
    return [f"s_lshl_b32 s{sPFH}, s{sR}, 9\ns_sub_u32 s{sPFH}, 512, s{sPFH}", tagged(f"buffer_load_dword a213, v104, {srd(SW1)}, s{sPFH} offen", "pf")]
def pf_w():
    return [tagged(f"buffer_load_ushort a{216+k}, v105, {srd(x)}, s{sPFW} offen", "pf") for k, x in enumerate((SWR, SWI))]

def tables(c):
    ch = fd_frags(sPR0, vFD)
    ch.append(opt("fd2", heavy1(), [PR1, fd_frags(sPR1, vFD2)]))
    K16 = [16 * (e >> 2) + (e & 3) for e in range(8)]
    pre = f"v_and_b32 v12, 15, v{vLANE}\nv_lshrrev_b32 v13, 4, v{vLANE}\nv_lshrrev_b32 v17, 5, v{vLANE}\nv_lshlrev_b32 v17, 8, v17\nv_add_u32 v17, s{sB}, v17\nv_cvt_f32_u32 v17, v17\nv_mul_f32 v17, {fhex(1/2048)}, v17\nv_and_b32 v18, 31, v{vLANE}\nv_cvt_f32_u32 v18, v18\nv_mul_f32 v19, v18, v17"
    for st in range(2):
        ch.append([pre if st == 0 else None, cos8(vE1 + 4 * st, 22, 19, 18, [st / 2 + (e >> 2) / 4 + (e & 3) / 32 for e in range(8)], sin_dst=vE1 + 8 + 4 * st)])
    if c.e3early: ch.append(e3_table(22, 13, 12, 17, 18, 19))
    u0, u1, u2, u3, u4 = sT[5], sT[6], sT[7], sT[8], sT[9]
    o = [f"s_and_b32 s{u0}, s{sB}, 1\ns_lshl_b32 s{u0}, s{u0}, 5\ns_bfe_u32 s{u1}, s{sB}, 0x20001\ns_lshl_b32 s{u1}, s{u1}, 4\ns_bitcmp1_b32 s{sB}, 3\ns_cselect_b32 s{u2}, {fhex(-0.25)}, 0"]
    o.append(f"v_add_u32 v18, s{u1}, v12\nv_cvt_f32_u32 v18, v18\nv_mul_f32 v18, {fhex(1/64)}, v18\nv_lshl_add_u32 v19, v13, 2, s{u0}\nv_cvt_f32_u32 v19, v19\nv_fma_f32 v19, v19, v18, s{u2}")
    o.append(cos8(30, 22, 19, 18, K16))
    o.append(f"s_lshl_b32 s{u0}, s{sFJ}, 14\ns_lshl_b32 s{u1}, s{sB}, 10\ns_add_u32 s{u0}, s{u0}, s{u1}\ns_add_u32 s{u0}, s{u0}, {CS}\ns_cmp_lt_u32 s{sB}, 16\ns_cselect_b32 s{u0}, s{u0}, {OOB}")
    o.append(tagged(f"buffer_store_dwordx4 v[30:33], v{vL16}, {srd(SWS)}, s{u0} offen sc1", "tab"))
    ch.append(o)
    o = [f"s_mul_i32 s{u0}, s{sB}, 57\ns_lshr_b32 s{u0}, s{u0}, 10\ns_mul_i32 s{u1}, s{u0}, 18\ns_sub_u32 s{u1}, s{sB}, s{u1}"]
    o.append(f"s_lshl_b32 s{u2}, s{u1}, 4\ns_mul_i32 s{u3}, s{sR}, 320\ns_add_u32 s{u3}, s{u3}, s{u2}\ns_lshl_b32 s{u4}, s{sR}, 5\ns_add_u32 s{u4}, s{u4}, s{u2}\ns_cmp_lt_u32 s{u1}, 16\ns_cselect_b32 s{u3}, s{u3}, s{u4}")
    o.append(f"s_add_u32 s{u0}, s{u0}, s{sKS0}\ns_lshl_b32 s{u0}, s{u0}, 1"); o.append(col_off(u4, u0))
    o.append(f"v_add_u32 v17, s{u3}, v12\nv_lshl_add_u32 v18, v13, 2, s{u4}\nv_mov_b32 v26, {fhex(2/(2048*576))}\nv_mov_b32 v27, {fhex(1/(2048*576))}")
    for k in range(4):
        o.append(f"v_add_u32 v19, {16*(k>>1) + 2*(k&1)}, v18\nv_cmp_eq_u32 vcc, 0x120, v19\nv_mul_u32_u24 v19, v19, v17"); o.append(mod576(19, 20))
        o.append(f"v_cndmask_b32 v20, v26, v27, vcc\nv_cvt_f32_u32 v19, v19\nv_mul_f32 v22, {fhex(1/576)}, v19\nv_add_f32 v23, 0x3e800000, v22\nv_cos_f32 v22, v22\nv_cos_f32 v23, v23\nv_mul_f32 v22, v22, v20\nv_mul_f32 v23, v23, v20")
        o.append(f"v_cvt_pk_bf16_f32 v{34+k}, v22, v23")
    o.append(f"s_mul_i32 s{u0}, s{sFJ}, 55296\ns_lshl_b32 s{u1}, s{sB}, 10\ns_add_u32 s{u0}, s{u0}, s{u1}\ns_add_u32 s{u0}, s{u0}, {GD}\ns_cmp_lt_u32 s{sB}, 54\ns_cselect_b32 s{u0}, s{u0}, {OOB}")
    o.append(tagged(f"buffer_store_dwordx4 v[34:37], v{vL16}, {srd(SWS)}, s{u0} offen sc1", "tab"))
    ch.append(o)
    return ch

def w_loads(rnd, js):
    p = []
    for j in js:
        for r in range(4):
            p.append(f"s_mov_b32 s{sT[2*rnd]}, {(16*j + r)*18496}")
            p.append(tagged(f"buffer_load_ushort v{vWR[rnd]+4*j+r}, v73, {srd(SWR)}, s{sT[2*rnd]} offen", f"w{rnd}"))
            p.append(tagged(f"buffer_load_ushort v{vWI[rnd]+4*j+r}, v73, {srd(SWI)}, s{sT[2*rnd]} offen", f"w{rnd}"))
    return p
def w_addr(tau, kap):
    return [col_off(sT[1], tau), f"""s_lshl_b32 s{sT[2]}, s{kap}, 2
s_add_u32 s{sT[2]}, s{sT[2]}, s{sW}
s_mul_i32 s{sT[2]}, s{sT[2]}, 578
s_lshl_b32 s{sT[1]}, s{sT[1]}, 1
s_add_u32 s{sT[1]}, s{sT[1]}, s{sT[2]}
v_lshrrev_b32 v73, 4, v{vLANE}
v_mul_u32_u24 v73, 73984, v73
v_and_b32 v79, 14, v{vLANE}
v_lshl_add_u32 v73, v79, 1, v73
v_add_u32 v73, s{sT[1]}, v73"""]

def layernorm(c):
    p = []; a = p.append
    a(["s_waitcnt lgkmcnt(0)", "s_barrier"])
    dm = [dma_w1(0, h, i, "blk0") for h in range(2) for i in range(9)]
    a(stamp(c, "bx", True))
    a(f"v_mov_b32 v104, v{vPF1}\nv_mov_b32 v105, v{vPFW}")
    if c.prefetch: a(pf_w1(0))
    v, m = 74, 78
    a("v_add_f32 v72, v72, v73\nv_add_f32 v76, v76, v77\nv_add_f32 v74, v74, v75\nv_add_f32 v78, v78, v79\nv_add_f32 v74, v72, v74\nv_add_f32 v78, v76, v78")
    a("v_mov_b32 v72, v74\nv_mov_b32 v76, v78\ns_nop 0\nv_permlane32_swap_b32 v72, v74\nv_permlane32_swap_b32 v76, v78\nv_add_f32 v74, v74, v72\nv_add_f32 v78, v78, v76")
    a(f"v_mul_f32 v{m}, {fhex(1/576)}, v{m}")
    rb = lambda r: f"v_cvt_pk_bf16_f32 v{r}, v{r}, v{r}\nv_lshlrev_b32 v{r}, 16, v{r}"
    a(f"v_mul_f32 v{v}, {fhex(1/576)}, v{v}\nv_fma_f32 v{v}, -v{m}, v{m}, v{v}\nv_max_f32 v{v}, 0, v{v}"); a(rb(m))
    fin = flatten([rb(v), f"v_add_f32 v{v}, {fhex(1e-5)}, v{v}", rb(v), f"v_sqrt_f32 v{v}, v{v}", rb(v), f"v_rcp_f32 v{v}, v{v}\nv_mul_f32 v{vRS}, {fhex(-LOG2E)}, v{v}"])
    for k in range(16):
        a(f"v_xor_b32 v{vCM+k}, 0x80000000, v{m}")
        if fin: a(fin.pop(0))
    assert not fin
    def unpack(pp):
        D = vr(vD[pp & 1], 16)
        return [f"{M32} {D}, {ar(aSEL)}, {vr(112+8*pp)}, {vr(vCM, 16)}", f"{M32} {D}, {ar(aSEL+4)}, {vr(116+8*pp)}, {D}"]
    a(stamp(c, "head", True))
    u = unpack(0); a(u[0])
    fw = []
    if c.spectral:
        a(opt("fdw2", heavy1(), [fd_write(vFD2, SLOT[2] + 18432), WAITL("fd")]))
        fw = flatten(fd_write(vFD, SLOT[2])); a(fw[:-5]); fw = fw[-5:]
        a(f"v_add_u32 v74, {SLOT[2]}, v{vL16}")
    a(u[1])
    for pp in range(18):
        mf = unpack(pp + 1) if pp + 1 < 18 else [None, None]
        D = vD[pp & 1]
        vo = [f"v_mul_f32 v{D+i}, v{D+i}, v{vRS}" for i in range(16)]
        vo += [f"v_cvt_pk_bf16_f32 v{D+i}, v{D+2*i}, v{D+2*i+1}" for i in range(8)]
        vo += [f"v_accvgpr_write_b32 a{8*pp+i}, v{D+i}" for i in range(8)]
        d_ = [dm.pop(0) if (dm and pp >= c.dma_from) else [None, None] for k in range(2 if pp >= 18 - c.dma_from else 1)] + [[None, None]]
        a([d_[0][0], mf[0], fw.pop(0) if fw else None, d_[0][1], vo[:10], d_[1][0], mf[1], d_[1][1], vo[10:]])
        if c.prefetch and pp == c.pfa: a(pf_w1(1))
        if c.prefetch and pp == c.pfa + 4: a(pf_w())
        if c.prefetch and pp == c.pfa + 8: a(pf_w1(2))
        if pp in (1, 6, 12): a(stamp(c, f"pp{pp}", True))
    assert not dm
    a(stamp(c, "norm"))
    if c.spectral:
        a([WAITL("fd"), "s_barrier"])
        fdr = lambda ks: f"ds_read_b128 {ar(aFD[ks%8])}, v74 offset:{18432+1024*(ks%18)}"
        extra = [fdr(ks) for ks in range(7)] + [STG1]
        for ks in range(36):
            extra.append(p1a(ks, ar(aFD[ks % 8])))
            if ks + 7 < 36: extra.append(fdr(ks + 7))
        a(opt("p1c", heavy1(), [PR1, extra, p1b(sPR1, SP + 8192)]))
    return p

def p1a(ks, fr):
    A = vr(vLO if ks < 18 else vHI, 16)
    return f"{M32} {A}, {ar(4*ks)}, {fr}, {'0' if ks % 18 == 0 else A}"
vP, vQ = 144, 160
STG1 = f"""v_lshrrev_b32 v75, 5, v{vLANE}
s_lshl_b32 s{sT[5]}, s{sW}, 2
v_add_u32 v75, s{sT[5]}, v75
v_and_b32 v76, 15, v{vLANE}
v_xor_b32 v75, v75, v76
v_xor_b32 v76, 2, v75
v_lshlrev_b32 v75, 3, v75
v_lshlrev_b32 v76, 3, v76
v_and_b32 v72, 31, v{vLANE}
v_lshl_add_u32 v75, v72, 7, v75
v_lshl_add_u32 v76, v72, 7, v76"""
def p1b(pair, sp):
    o1 = [[f"s_cmp_lt_u32 s{pair}, 9", f"s_cselect_b32 s{sSGN}, 1.0, -1.0"]]
    o1 += [f"v_fma_f32 v{vLO+i}, v{vHI+i}, s{sSGN}, v{vLO+i}" for i in range(16)]
    o1 += [f"v_cvt_pk_bf16_f32 v{vLO+i}, v{vLO+2*i}, v{vLO+2*i+1}" for i in range(8)]
    o2 = []
    for st in range(2):
        for part in range(2):
            A = vr(vQ if part else vP, 16)
            o2.append(f"{M32} {A}, {vr(vLO+4*st)}, {vr(vE1+8*part+4*st)}, {'0' if st == 0 else A}")
    o3 = []
    for gq in range(4):
        x, y = vP + 4 * gq, vQ + 4 * gq
        o3 += [f"v_add_f32 v{x}, v{x}, v{y+1}", f"v_sub_f32 v{x+1}, v{x+1}, v{y}", f"v_add_f32 v{x+2}, v{x+2}, v{y+3}", f"v_sub_f32 v{x+3}, v{x+3}, v{y+2}"]
        o3 += [f"v_cvt_pk_bf16_f32 v{x}, v{x}, v{x+1}", f"v_cvt_pk_bf16_f32 v{x+1}, v{x+2}, v{x+3}"]
    o4 = [tagged(f"ds_write_b64 v{75+(gq&1)}, {vr(vP+4*gq, 2)} offset:{sp+4096*(gq>>1)}", "stg") for gq in range(4)]
    return [o1, o2, o3, o4]

NONCE = f"v_accvgpr_read_b32 v19, a215\ns_nop 0\nv_readfirstlane_b32 s{sNON}, v19\ns_nop 0\ns_mul_i32 s{sNON}, s{sNON}, 0x9e3779b1\ns_add_u32 s{sNON}, s{sNON}, 0x7f4a7c15"
def heavy1(): return f"s_lshr_b32 s{sT[6]}, 0x1100, s{sFJ}\ns_bitcmp1_b32 s{sT[6]}, 0"
def heavy3(): return f"s_lshr_b32 s{sT[6]}, 5, s{sQ}\ns_bitcmp1_b32 s{sT[6]}, 0"
def dbl(): return f"s_and_b32 s{sT[6]}, s{sFJ}, 11\ns_cmp_eq_u32 s{sT[6]}, 9"

def g1_bases():
    o = f"""v_bfe_u32 v15, v{vLANE}, 2, 2
v_lshrrev_b32 v16, 5, v{vLANE}
v_lshl_add_u32 v16, v16, 3, v15
v_bfe_u32 v17, v{vLANE}, 4, 1
v_and_b32 v18, 3, v{vLANE}
v_lshlrev_b32 v18, 3, v18
v_lshl_add_u32 v17, v17, 5, v18
v_lshl_add_u32 v{vG1H}, v16, 6, v17
v_add_u32 v{vG1H}, {WIN[0]}, v{vG1H}
v_lshl_add_u32 v16, v16, 7, v17
v_lshrrev_b32 v15, 1, v15
v_lshl_add_u32 v17, v15, 6, v16
v_xor_b32 v15, 1, v15
v_lshl_add_u32 v18, v15, 6, v16"""
    for n in range(2):
        for k in range(3): o += f"\nv_add_u32 v{vG1[n][k]}, {WIN[k]}, v{17+n}"
    return o

def g2_bases():
    t = [34, 35, 36, 37]
    o = f"""v_bfe_u32 v{t[0]}, v{vLANE}, 2, 2
v_bfe_u32 v{t[1]}, v{vLANE}, 4, 1
v_lshrrev_b32 v{t[2]}, 5, v{vLANE}
v_lshl_add_u32 v{t[2]}, v{t[2]}, 2, v{t[0]}
v_lshl_add_u32 v{t[2]}, v{t[1]}, 4, v{t[2]}
v_lshrrev_b32 v{t[0]}, 1, v{t[0]}
v_lshl_add_u32 v{t[0]}, v{t[1]}, 1, v{t[0]}
v_and_b32 v{t[3]}, 3, v{vLANE}
v_lshlrev_b32 v{t[3]}, 3, v{t[3]}
v_lshl_add_u32 v38, v{t[2]}, 6, v{t[3]}
v_lshl_add_u32 v39, v{t[2]}, 7, v{t[3]}"""
    for n in range(4):
        o += f"\nv_xor_b32 v{t[2]}, {n}, v{t[0]}\nv_lshl_add_u32 v{t[2]}, v{t[2]}, 5, v39"
        for k in range(3): o += f"\nv_add_u32 v{vG2[n][k]}, {WIN[k]}, v{t[2]}"
    for n in range(2):
        o += f"\nv_xor_b32 v{t[2]}, {n}, v{t[1]}\nv_lshl_add_u32 v{t[2]}, v{t[2]}, 5, v38"
        for k in range(2): o += f"\nv_add_u32 v{vG2H[n][k]}, {WIN[k]}, v{t[2]}"
    o += f"\nv_add_u32 v{vGDW2}, {WIN[2]}, v{vL16}\nv_add_u32 v{vGDW1}, {WIN[1]}, v{vL16}"
    return o

def stage_addr(nrd, rowshift, tmp, rows_per_wave):
    g, x = tmp + 1, tmp + 2
    o = f"""v_lshrrev_b32 v{g}, 4, v{vLANE}
s_mul_i32 s{sT[7]}, s{sW}, {rows_per_wave}
v_add_u32 v{g}, s{sT[7]}, v{g}
v_and_b32 v{x}, 15, v{vLANE}
v_lshlrev_b32 v{tmp}, {rowshift}, v{g}
v_lshl_add_u32 v{tmp}, v{x}, 3, v{tmp}
v_xor_b32 v{x}, v{x}, v{g}
v_and_b32 v{x}, 15, v{x}
v_lshlrev_b32 v{x}, 3, v{x}
v_lshl_add_u32 v{g}, v{g}, 7, v{x}"""
    for i in range(1, nrd): o += f"\nv_xor_b32 v{g+i}, {32*i}, v{g}"
    return o

def p2_block(rnd):
    o = []; Z = vZ[rnd]; WR, WI = vWR[rnd], vWI[rnd]; mo, me, ms, ad = vPT, vPT + 1, vPT + 2, vPT + 3
    zs = lambda k: vZS[k >> 2] + (k & 3)
    o.append(f"""v_and_b32 v{me}, 1, v{vLANE}
v_mul_u32_u24 v{mo}, 0x8000, v{me}
v_lshl_or_b32 v{mo}, v{mo}, 16, v{mo}
v_xor_b32 v{me}, 0x80008000, v{mo}
v_and_b32 v{ms}, 0x80000000, v{me}""")
    for k in range(8): o.append(f"v_xor_b32_dpp v{zs(k)}, v{Z+k}, v{mo} {DPPSW}")
    sh = []
    for k in range(16): sh += [f"v_lshlrev_b32 v{WR+k}, 16, v{WR+k}", f"v_lshl_add_u32 v{WI+k}, v{WI+k}, 16, v{ms}"]
    cs = lambda part, j, ks: ar(aCS + 4 * (8 * part + 2 * j + ks))
    for ks in range(2):
        for part in range(2):
            for j in range(4):
                src = vr(Z + 4 * ks) if part == 0 else vr(vZS[ks])
                o.append(f"{M16} {vr(vZA[j])}, {cs(part, j, ks)}, {src}, {'0' if ks + part == 0 else vr(vZA[j])}")
                o += sh[:2]; sh = sh[2:]
    o.append(f"""v_and_b32 v{ad+1}, 15, v{vLANE}
v_lshrrev_b32 v{ad}, 4, v{vLANE}
s_lshl_b32 s{sT[7]}, s{sW}, 2
v_add_u32 v{ad}, s{sT[7]}, v{ad}
v_xor_b32 v{ad}, v{ad}, v{ad+1}
v_lshlrev_b32 v{ad}, 3, v{ad}
v_lshl_add_u32 v{ad}, v{ad+1}, 7, v{ad}""")
    for j in range(4):
        for r in range(4): o.append(f"v_mul_f32 v{WR+4*j+r}, v{vZA[j]+r}, v{WR+4*j+r}")
        for r in range(4): o.append(f"v_fmac_f32_dpp v{WR+4*j+r}, v{vZA[j]+r}, v{WI+4*j+r} {DPPSW}")
    for k in range(8): o.append(f"v_cvt_pk_bf16_f32 v{Z+k}, v{WR+2*k}, v{WR+2*k+1}")
    for k in range(8): o.append(f"v_xor_b32_dpp v{zs(k)}, v{Z+k}, v{me} {DPPSW}")
    for ks in range(2):
        for part in range(2):
            for j in range(4):
                src = vr(Z + 4 * ks) if part == 0 else vr(vZS[ks])
                o.append(f"{M16} {vr(vZA[j])}, {src}, {cs(part, j, ks)}, {'0' if ks + part == 0 else vr(vZA[j])}")
    for j in range(4):
        o += [f"v_cvt_pk_bf16_f32 v{WR+2*j}, v{vZA[j]}, v{vZA[j]+1}", f"v_cvt_pk_bf16_f32 v{WR+2*j+1}, v{vZA[j]+2}, v{vZA[j]+3}"]
    for j in range(4):
        o.append(tagged(f"ds_write_b64 v{ad}, {vr(WR+2*j, 2)} offset:{SP+8192*rnd+2048*j}", "stg2"))
    return o

vY1 = 40
def p3a_block(kis):
    o = []; tmp = 64
    taus = [(ki, h) for ki in kis for h in range(2)]
    def mf(n):
        ki, h = taus[n]; P = tmp + 16 * (n % 3)
        return [f"{M16} {vr(P+8*t+4*part)}, {ar(aT2+4*(2*ki+h))}, {ar(aE3+8*part+4*t)}, 0" for t in range(2) for part in range(2)]
    def fin(n):
        ki, h = taus[n]; r = []
        for t in range(2):
            P = tmp + 16 * (n % 3) + 8 * t; Q = P + 4
            r += [f"v_sub_f32 v{P}, v{P}, v{Q+1}", f"v_add_f32 v{P+1}, v{P+1}, v{Q}", f"v_sub_f32 v{P+2}, v{P+2}, v{Q+3}", f"v_add_f32 v{P+3}, v{P+3}, v{Q+2}"]
        for t in range(2):
            P = tmp + 16 * (n % 3) + 8 * t; Y = vY1 + 8 * ki + 4 * t + 2 * h
            r += [f"v_cvt_pk_bf16_f32 v{Y}, v{P}, v{P+1}", f"v_cvt_pk_bf16_f32 v{Y+1}, v{P+2}, v{P+3}"]
        return r
    for n in range(len(taus) + 2):
        m = mf(n) if n < len(taus) else []
        f = fin(n - 2) if n >= 2 else []
        for k in range(4):
            if m: o.append(m[k])
            o += f[3 * k:3 * k + 3]
    return o

def main_stream(c):
    S = Stream(); bars = {}
    def rd2(regs, addr0, step):
        def mk(b):
            r = []
            for u in range(2):
                w, off = win(addr0 + step * u)
                r.append(f"ds_read_b64_tr_b16 a[{b+2*u}:{b+2*u+1}], v{regs[w]} offset:{off}")
            return r
        return mk
    S.mark("pf")
    for ks in range(36):
        f = S.add_frag((lambda ks: lambda b: [f"ds_read_b128 {ar(b)}, v74 offset:{1024*(ks%18)}"])(ks), None)
        S.add((lambda ks: lambda fr: p1a(ks, fr))(ks), f)
    bars["EB"] = len(S.g) - c.bar32
    for ps in range(9):
        S.mark(f"p{ps}")
        A = vr(ACC1(ps), 16)
        for ks in range(36):
            if ps < 8:
                beta, n = ps >> 1, ps & 1
                f = S.add_frag(rd2(vG1[n], SLOT[2 * (beta & 1) + ks // 18] + 2048 * (ks % 18), 512), "EB" if beta == 0 else f"E{beta-1}")
            else:
                f = S.add_frag(rd2([vG1H], SLOT[0] + 1024 * ks, 256), "E3")
            S.add((lambda A, ks: lambda fr: f"{M32} {A}, {fr}, {ar(4*ks)}, {'0' if ks == 0 else A}")(A, ks), f)
        if ps % 2 == 1 or ps == 8: bars[f"E{ps//2 if ps < 8 else 4}"] = len(S.g) - c.bar32
    def g2(name, slot, items, bar_in, bar_out):
        S.mark(name)
        for kind, off, tile, bop, first in items:
            n = tile % 4 if tile < 16 else tile - 16
            if kind == "F": mk = rd2(vG2[n], SLOT[slot] + off, 1024)
            elif kind == "H": mk = rd2(vG2H[n], SLOT[slot] + off, 512)
            else: mk = (lambda o: lambda b: [f"ds_read_b128 {ar(b)}, v{vGDW2} offset:{o}"])(SLOT[slot] + off - WIN[2])
            f = S.add_frag(mk, bar_in)
            for t in range(2):
                A = vr(ACC2(tile, t))
                S.add((lambda A, B, first: lambda fr: f"{M16} {A}, {fr}, {B}, {'0' if first else A}")(A, bop(t), first), f)
        if bar_out: bars[bar_out] = len(S.g) - 8
    own = lambda k: (lambda t: vr(Hreg(k) + 4 * t))
    par = lambda k: (lambda t: ar(aHP + 8 * k + 4 * t))
    for beta in range(4):
        g2(f"A{beta}", (1 + beta) % 4, [("F", 4096 * k, 4 * beta + n, own(k), k == 0) for k in range(7) for n in range(4)], f"E{4+beta}", f"E{5+beta}")
    g2("L", 1, [("F", 4096 * (2 * beta + k), 4 * beta + n, own(7 + k), False) for k in range(2) for beta in range(4) for n in range(4)], "E8", "E9")
    g2("HA", 2, [("H", 2048 * k, 16 + n, own(k), k == 0) for k in range(9) for n in range(2)], "E9", "E10")
    g2("GD", 3, [("G", 1024 * (18 * ki + tile), tile, (lambda ki: lambda t: vr(vY1 + 8 * ki + 4 * t))(ki), False) for ki in range(2) for tile in range(18)], "E10", "E11")
    for beta in range(4):
        g2(f"B{beta}", beta, [("F", 4096 * k, 4 * beta + n, par(k), False) for k in range(9) for n in range(4)], f"E{11+beta}", f"E{12+beta}")
    g2("HB", 0, [("H", 2048 * k, 16 + n, par(k), False) for k in range(9) for n in range(2)], "E15", None)
    S.mark("end")
    mk = S.marks; NG = len(S.g); G2 = mk["A0"]; O = mk["p0"]; B = bars

    vq = []
    blocks = {}; xrd = {}; after = {}; waits = {b: [] for b in bars}
    def block(g, body): blocks.setdefault(g, []).extend(flatten([body]))
    def push_vm(lo, hi, pre, ins):
        l = chain([pre, ins]); it = [lo, hi, l[:-1], l[-1]]
        vq.append(it); return l
    def spread(items, lo, hi):
        for i, (lds, text, tag) in enumerate(items):
            push_vm(lo + (i * (hi - lo)) // len(items), hi, f"s_add_u32 m0, s{sM0}, {lds}", tagged(text, tag))
    def w1blk(beta):
        return [(SLOT[2 * (beta & 1) + h] + 4096 * i - 128 * beta,
                 f"buffer_load_dwordx4 v{vDW1F}, {srd(SW1)}, s{sW1T+9*h+i} offen offset:{128*beta} lds", f"blk{beta}") for h in range(2) for i in range(9)]
    def w2full(slot, pieces, tag):
        return [(SLOT[slot] + 4096 * p - 128 * beta, f"buffer_load_dwordx4 v{vDW2F}, {srd(SW2)}, s{sW2T+k} offen offset:{128*beta} lds", tag) for p, (k, beta) in enumerate(pieces)]
    def spread_half(slot, treg, tag, lo, hi):
        for i in range(5):
            m0 = f"s_add_u32 m0, s{sM0}, {SLOT[slot]+4096*i}" if i < 4 else f"s_add_u32 m0, s{treg+5}, {SLOT[slot]}"
            push_vm(lo + (i * (hi - lo)) // 5, hi, m0, tagged(f"buffer_load_dwordx4 v{vDW2H}, {srd(SW2)}, s{treg+i} offen lds", tag))
    def half_table(treg, src):
        o = f"s_add_u32 s{sT[8]}, s{sM0}, 16384\ns_add_u32 s{sT[9]}, s{sM0}, 12288\ns_cmp_ge_u32 s{sW}, 2"
        for i in range(4): o += f"\ns_cselect_b32 s{treg+i}, s{src+2*i+1}, s{src+2*i}"
        o += f"\ns_cselect_b32 s{treg+4}, s{src+7}, s{src+8}\ns_cselect_b32 s{treg+5}, s{sT[9]}, s{sT[8]}"
        return o
    sHT = sW1T; sGD = sW1T + 14
    spread(w1blk(1), B["EB"] + 1, B["EB"] + 52); spread(w1blk(2), B["E0"] + 1, B["E0"] + 52); spread(w1blk(3), B["E1"] + 1, B["E1"] + 52)
    spread([(SLOT[0] + 4096 * i, f"buffer_load_dwordx4 v{vDW1H}, {srd(SW1)}, s{sHT+i} offen lds", "half") for i in range(9)], B["E2"] + 2, B["E2"] + 30)
    spread(w2full(1, [(k, 0) for k in range(7)], "A0"), B["E2"] + 40, B["E2"] + 66)
    spread(w2full(2, [(k, 1) for k in range(7)], "A1"), B["E3"] + 1, B["E3"] + 20)
    spread(w2full(3, [(k, 2) for k in range(7)], "A2"), B["E3"] + 20, G2 - 2)
    spread(w2full(0, [(k, 3) for k in range(7)], "A3"), G2 + 40, G2 + 110)
    spread(w2full(1, [(7 + k, beta) for beta in range(4) for k in range(2)], "L"), G2 + 112, G2 + 156)
    spread_half(2, sW1T + 0, "M", G2 + 158, G2 + 182)
    for i in range(9):
        push_vm(G2 + 184 + 4 * i, G2 + 236, f"s_add_u32 m0, s{sM0}, {SLOT[3]+4096*i}\ns_add_u32 s{sT[11]}, s{sGD}, {4096*i}",
                tagged(f"buffer_load_dwordx4 v{vL16}, {srd(SWS)}, s{sT[11]} offen sc1 lds", "GD"))
    spread(w2full(0, [(9 + k, 0) for k in range(9)], "B0"), B["E8"] + 10, B["E9"] + 6)
    spread(w2full(1, [(9 + k, 1) for k in range(9)], "B1"), B["E9"] + 8, B["E11"] - 4)
    spread(w2full(2, [(9 + k, 2) for k in range(9)], "B2"), B["E11"] + 2, B["E11"] + 44)
    spread(w2full(3, [(9 + k, 3) for k in range(9)], "B3"), B["E11"] + 46, B["E12"] + 30)
    spread_half(0, sW1T + 6, "HB", B["E12"] + 34, B["E13"] - 4)
    pub = {"EB": "blk0", "E0": "blk1", "E1": "blk2", "E2": "blk3", "E3": "half", "E4": "A0", "E5": "A1", "E6": "A2", "E7": "A3", "E8": "L", "E9": "M",
           "E10": "GD", "E11": "B0", "E12": "B1", "E13": "B2", "E14": "B3", "E15": "HB"}
    free = {"blk1": "EB", "blk2": "E0", "blk3": "E1", "half": "E2", "A0": "E2", "A1": "E3", "A2": "E3", "A3": "E4", "L": "E5", "M": "E6", "GD": "E7",
            "B0": "E8", "B1": "E9", "B2": "E11", "B3": "E11", "HB": "E12"}
    for b in bars: waits[b].append(WAITV(pub[b]))
    block(B["E2"], f"s_cmp_ge_u32 s{sW}, 2\n" + "\n".join(f"s_cselect_b32 s{sHT+i}, s{sW1T+2*i+1}, s{sW1T+2*i}" for i in range(9)))
    block(B["E4"], [half_table(sW1T + 0, sW2T), half_table(sW1T + 6, sW2T + 9),
                    f"s_mul_i32 s{sGD}, s{sFJ}, 55296\ns_add_u32 s{sGD}, s{sGD}, s{sM0}\ns_add_u32 s{sGD}, s{sGD}, {GD}"])
    fa = sT[7]

    lq0 = []; lq1 = []
    def atoms(l):
        out = []; cur = []
        for i, x in enumerate(l):
            cur.append(x); live = False
            for r in (("s", "scc"), ("s", "vcc")):
                for y in l[i + 1:]:
                    if r in y.rd: live = True; break
                    if r in y.wr: break
            if not live: out.append(cur if len(cur) > 1 else cur[0]); cur = []
        return out
    def feed(q, lo, body, cb=None, front=False):
        at = atoms(chain(body)); it = [(lo, x, cb if n == len(at) - 1 else None) for n, x in enumerate(at)]
        if front: q[:0] = it
        else: q += it
    wl = flatten(w_loads(0, range(4)))
    def w_go(g):
        for k in range(16):
            lo = g + 1 + (k * c.wspan) // 16
            a_ = push_vm(lo, O + 140, wl[3 * k], wl[3 * k + 1]); b_ = push_vm(lo, O + 140, None, wl[3 * k + 2]); CHAINS.append(a_ + b_)
    feed(lq1, 0, w_addr(sTAU1, sXCD), w_go)
    feed(lq1, 0, g1_bases(), lambda g: need.append((g, B["EB"] - 1, "g1 bases")))
    feed(lq1, 0, STG1); feed(lq1, 0, stage_addr(2, 11, 176, 8)); feed(lq1, 0, NONCE)
    need = []

    def t1_pair(pair, n):
        base = 168 if n == 0 else 160
        rd = [f"ds_read_b64_tr_b16 {vr(base+4*ti+2*i, 2)}, v{177+i} offset:{SP+8192*n+4096*ti+512*i}" for ti in range(2) for i in range(2)]
        st = [f"s_lshl_b32 s{sT[1]}, s{pair}, 17\ns_lshl_b32 s{sT[2]}, s{sMI}, 7\ns_add_u32 s{sT[1]}, s{sT[1]}, s{sT[2]}\ns_add_u32 s{sT[1]}, s{sT[1]}, {T1}"]
        for ti in range(2):
            for i in range(2):
                st.append([f"s_add_u32 s{sT[2]}, s{sT[1]}, {65536*ti + 8192*i}",
                           tagged(f"buffer_store_dwordx2 {vr(base+4*ti+2*i, 2)}, v176, {srd(SWS)}, s{sT[2]} offen sc1", "t1st")])
        return rd, st
    o1, o2, o3, o4 = p1b(sPR0, SP)
    def p1b_3(g):
        r0, s0 = t1_pair(sPR0, 0); r1, s1 = t1_pair(sPR1, 1)
        block(g, o4); pre = chain(s0[0])
        block(g + 2, [pre, WAITL("stg"), "s_barrier"])
        for k in range(4): xrd.setdefault(g + 3 + k, []).append(I(r0[k]))
        for k in range(4): CHAINS.append(pre + push_vm(g + 7 + 2 * k, g + 17, s0[1 + k][0], s0[1 + k][1]))
        block(g + 18, opt("t1c", heavy1(), [PR1, r1, s1]))
        gp = g + 18 + c.x1lag
        fl = chain([f"s_lshl_b32 s{fa}, s{sFJ}, 5\ns_add_u32 s{fa}, s{fa}, s{sMI}\ns_lshl_b32 s{fa}, s{fa}, 2\ns_add_u32 s{fa}, s{fa}, {FL1}", flag_store(fa)])
        if abs(gp - B["E0"]) <= 8:
            gp = B["E0"]; waits["E0"] += [WAITV("t1st"), WAITV("tab")]; after.setdefault("E0", []).extend(fl)
        else: block(gp, [WAITV("t1st"), WAITV("tab"), "s_barrier", fl])
        info["x1"] = gp; need.append((g + 8, O + 70, "P regs"))
    def p1b_2(g):
        block(g + 1, o2); feed(lq0, g + 4, o3, p1b_3)
    info = {}
    feed(lq0, O + 3, o1, p1b_2)
    block(B["EB"] - 2, opt("w2", dbl(), [f"v_mov_b32 v72, v73", w_addr(sTAU2, sKAP2), w_loads(1, range(4)), "v_mov_b32 v73, v72"]))

    sC1, sC2 = sT[3], sT[4]
    feed(lq1, 0, f"""s_lshr_b32 s{sC1}, s{sTAU1}, 1
s_cmp_ge_u32 s{sTAU1}, 18
s_subb_u32 s{sC1}, s{sC1}, 0
s_cmp_lt_u32 s{sTAU2}, 34
s_cselect_b32 s{sC2}, 15, 12
{dbl()}
s_cselect_b32 s{sC2}, s{sC2}, s{sC1}
s_mul_i32 s{sC2}, s{sC2}, 0x1010000
s_lshl_b32 s{sT[13]}, s{sC1}, 8
s_or_b32 s{sC2}, s{sC2}, s{sT[13]}
s_or_b32 s{sC2}, s{sC2}, s{sFJ}
v_lshrrev_b32 v181, 4, v{vLANE}
v_lshlrev_b32 v181, 3, v181
v_bfe_u32 v181, s{sC2}, v181, 8
v_and_b32 v182, 15, v{vLANE}
v_lshlrev_b32 v182, 2, v182
v_lshl_add_u32 v181, v181, 7, v182
s_lshl_b32 s{sC1}, s{sC1}, 14
s_add_u32 s{sC1}, s{sC1}, s{sM0}
s_add_u32 s{sC1}, s{sC1}, {CS}""")
    if c.prefetch:
        push_vm(1, 6, None, pf_w1(3)[0]); push_vm(8, 14, *pf_w1(4))
        pf2 = flatten([f"""s_and_b32 s{sT[8]}, s{sMI}, 7
s_lshl_b32 s{sT[8]}, s{sT[8]}, 1
s_add_u32 s{sT[8]}, s{sT[8]}, s{sR}
s_mul_i32 s{sT[8]}, s{sT[8]}, 41472
s_mul_i32 s{sT[13]}, s{sQ}, 663552
s_add_u32 s{sT[8]}, s{sT[8]}, s{sT[13]}
s_mul_i32 s{sT[13]}, s{sW}, 10368
s_add_u32 s{sT[8]}, s{sT[8]}, s{sT[13]}
v_min_u32 v77, 26, v{vLANE}
v_lshl_add_u32 v77, v77, 7, s{sT[8]}"""])
        def pf_go(g):
            for k, e in enumerate(("EB", "E0", "E1")):
                CHAINS.append(pf2 + push_vm(max(g + 1, B[e] + c.pf2at), B[e] + c.pf2at + 8, f"s_movk_i32 s{sT[11]}, {3456*k}",
                                            tagged(f"buffer_load_dword a{218+k}, v77, {srd(SW2)}, s{sT[11]} offen", "pf")))
        feed(lq1, 0, pf2, pf_go)
    feed(lq1, 0, g2_bases(), lambda g: need.append((g, O + 38, "setup uses the SiLU temporaries")))

    f1ld = f"buffer_load_dword v180, v181, {srd(SWS)}, s{fa} offen sc1"
    g1ck = O + c.f1at
    push_vm(g1ck - 26, g1ck - 16, f"s_movk_i32 s{fa}, {FL1}", tagged(f1ld, "f1"))
    def zloads(rnd, tau, kap):
        pre = f"s_lshl_b32 s{sT[5]}, s{tau}, 3\ns_add_u32 s{sT[5]}, s{sT[5]}, s{kap}\ns_lshl_b32 s{sT[5]}, s{sT[5]}, 2\ns_add_u32 s{sT[5]}, s{sT[5]}, s{sW}\ns_lshl_b32 s{sT[5]}, s{sT[5]}, 11\ns_add_u32 s{sT[5]}, s{sT[5]}, {T1}"
        return flatten([pre]), [tagged(f"buffer_load_dwordx2 {vr(vZ[rnd]+2*k, 2)}, v{vL8}, {srd(SWS)}, s{sT[5]} offen offset:{512*k} sc1", f"z{rnd}") for k in range(4)]
    pre1, z1 = zloads(1, sTAU2, sKAP2); pre0, z0 = zloads(0, sTAU1, sXCD)
    block(g1ck, [f"s_movk_i32 s{fa}, {FL1}", spin("f1", f1ld, 180), opt("z2", dbl(), [pre1, z1]), pre0])
    for k in range(4):
        push_vm(g1ck + 1 + 2 * k, B["E2"] - 20, f"s_add_u32 m0, s{sM0}, {SP+4096*k}\ns_add_u32 s{sT[11]}, s{sC1}, {4096*k}",
                tagged(f"buffer_load_dwordx4 v{vL16}, {srd(SWS)}, s{sT[11]} offen sc1 lds", "cs"))
        CHAINS.append(pre0 + push_vm(g1ck + 9 + 2 * k, B["E2"], None, z0[k]))
    waits["E2"].append(WAITV("cs"))
    for k in range(16): xrd.setdefault(B["E2"] + 5 + k, []).append(I(f"ds_read_b128 {ar(aCS+4*k)}, v{vL16} offset:{SP+1024*k}"))
    block(B["E2"] + 24, [WAITR([ar(aCS + 60)]), "s_barrier"])
    gP2 = B["E2"] + 26
    def t2_round(rnd, tau, kap):
        rd = [f"ds_read_b64_tr_b16 {vr(168+8*rnd+2*i, 2)}, v{161+i} offset:{SP+8192*rnd+512*i}" for i in range(4)]
        st = [flatten([f"s_lshl_b32 s{sT[1]}, s{tau}, 16\ns_lshl_b32 s{sT[2]}, s{kap}, 7\ns_add_u32 s{sT[1]}, s{sT[1]}, s{sT[2]}\ns_add_u32 s{sT[1]}, s{sT[1]}, {T2}"])]
        for i in range(4):
            st.append([f"s_add_u32 s{sT[2]}, s{sT[1]}, {4096*i}",
                       tagged(f"buffer_store_dwordx2 {vr(168+8*rnd+2*i, 2)}, v160, {srd(SWS)}, s{sT[2]} offen sc1", "t2st")])
        return rd, st
    ra, sa = t2_round(0, sTAU1, sXCD); rb_, sb = t2_round(1, sTAU2, sKAP2)
    block(gP2, [p2_block(0), opt("p2b", dbl(), p2_block(1)), stage_addr(4, 10, 160, 16), sa[0], WAITL("stg2"), "s_barrier", ra])
    for k in range(4): CHAINS.append(sa[0] + push_vm(gP2 + 3 + 2 * k, gP2 + 11, sa[1 + k][0], sa[1 + k][1]))
    block(gP2 + 12, opt("t2b", dbl(), [rb_, sb]))
    fl2 = lambda tau, kap: [f"s_lshl_b32 s{fa}, s{tau}, 3\ns_add_u32 s{fa}, s{fa}, s{kap}\ns_lshl_b32 s{fa}, s{fa}, 2\ns_add_u32 s{fa}, s{fa}, {FL2}", flag_store(fa)]
    waits[c.f2pub].append(WAITV("t2st"))
    after.setdefault(c.f2pub, []).extend([fl2(sTAU1, sXCD), opt("f2b", dbl(), fl2(sTAU2, sKAP2))])

    if not c.e3early: feed(lq1, G2 + c.e3at, e3_table(112, 10, 11, 12, 13, 14), lambda g: need.append((g, mk["HA"] - 2, "inverse table")))
    f2ld = f"buffer_load_dword v9, v8, {srd(SWS)}, s{sT[9]} offen sc1"
    f2s = f"s_lshl_b32 s{sT[9]}, s{sKS0}, 6\ns_add_u32 s{sT[9]}, s{sT[9]}, {FL2}"
    g2ck = G2 + c.f2at
    f2a = flatten([f"{heavy3()}\ns_cselect_b32 s{sT[9]}, 47, 31\nv_min_u32 v8, s{sT[9]}, v{vLANE}\nv_lshlrev_b32 v8, 2, v8"])
    block(g2ck - 46, f2a); CHAINS.append(f2a + push_vm(g2ck - 42, g2ck - 28, f2s, tagged(f2ld, "f2")))
    def t2loads(ks):
        r = []
        for k in ks:
            r.append((f"s_add_u32 s{sT[0]}, s{sT[5]}, {65536*k}", tagged(f"buffer_load_dwordx2 {ar(aT2+4*k, 2)}, v{vL8}, {srd(SWS)}, s{sT[0]} offen sc1", "t2ld")))
            r.append((None, tagged(f"buffer_load_dwordx2 {ar(aT2+4*k+2, 2)}, v{vL8}, {srd(SWS)}, s{sT[0]} offen offset:512 sc1", "t2ld")))
        return r
    gd3 = []
    for i in range(5):
        gd3.append(f"s_add_u32 m0, s{sM0}, {SLOT[2]+18432+4096*i}\ns_add_u32 s{sT[0]}, s{sGD}, {36864+4096*i}" if i < 4 else
                   f"s_add_u32 m0, s{sW1T+5}, {SLOT[2]+18432}\ns_sub_u32 s{sT[0]}, s{sW1T+5}, s{sM0}\ns_add_u32 s{sT[0]}, s{sT[0]}, s{sGD}\ns_add_u32 s{sT[0]}, s{sT[0]}, 36864")
        gd3.append(tagged(f"buffer_load_dwordx4 v{vL16}, {srd(SWS)}, s{sT[0]} offen sc1 lds", "M"))
    block(B["E7"] + 1, opt("gd3d", heavy3(), gd3))
    t2b = flatten([f"s_lshl_b32 s{sT[5]}, s{sKS0}, 7\ns_add_u32 s{sT[5]}, s{sT[5]}, s{sB}\ns_lshl_b32 s{sT[5]}, s{sT[5]}, 10\ns_add_u32 s{sT[5]}, s{sT[5]}, {T2}"])
    block(g2ck, [f2s, spin("f2", f2ld, 9), t2b, opt("t2c", heavy3(), [[x for pr in t2loads([4, 5]) for x in pr if x]])])
    ch_ = list(t2b)
    for n, (pre, ld) in enumerate(t2loads(range(4))): ch_ += push_vm(g2ck + 1 + 2 * n, g2ck + 30, pre, ld)
    CHAINS.append(ch_)
    gFH = B["E10"] + 1
    push_vm(gFH - 40, gFH - 26, f"s_xor_b32 s{sT[11]}, s{sFH}, 4", tagged(f"buffer_load_dword v33, off, {srd(SWS)}, s{sT[11]} sc1", "fh"))
    block(gFH, [f"s_xor_b32 s{sT[9]}, s{sFH}, 4", spin("fh", f"buffer_load_dword v33, off, {srd(SWS)}, s{sT[9]} sc1", 33)])
    hld = [flatten([f"s_add_u32 s{sT[10]}, s{sHLD}, {1024*k}" if k % 4 == 0 else None,
                    tagged(f"buffer_load_dwordx4 {ar(aHP+4*k)}, v{vL16}, {srd(SWS)}, s{sT[10]} offen offset:{1024*(k%4)} sc1", "hld")]) for k in range(18)]
    fr = [96 + 4 * k for k in range(8)]
    rd3 = lambda k: f"ds_read_b128 {ar(fr[k%8])}, v{vGDW1} offset:{SLOT[2]+18432+1024*k-WIN[1]}"
    g3 = [rd3(k) for k in range(7)] + p3a_block([2])
    for k in range(18):
        for t in range(2):
            g3.append(f"{M16} {vr(ACC2(k, t))}, {ar(fr[k%8])}, {vr(vY1+16+4*t)}, {vr(ACC2(k, t))}")
            if t == 0 and k + 7 < 18: g3.append(rd3(k + 7))
    p3 = []
    for x in flatten(p3a_block([0, 1])):
        p3.append(x)
        if x.kind == "M16" and hld: p3 += hld.pop(0)
    block(mk["GD"] - 1, [p3[:1], p3[1:], hld, opt("gd3", heavy3(), g3)])
    nld = f"buffer_load_dwordx4 v[10:13], v{vL16}, {srd(SWS)}, s{sT[9]} offen sc1"
    wg0 = f"s_cmp_eq_u32 s{sWG}, 0"
    block(mk["B1"] + 2, opt("n1", wg0, [f"s_movk_i32 s{sT[9]}, {FL2}", tagged(nld, "nl")]))
    block(mk["B2"] + 2, opt("n2", wg0, [f"s_movk_i32 s{sT[9]}, {FL2}", spin("n", nld, 10, 4), f"s_mov_b32 s{fa}, 0", flag_store(fa)]))
    for nm in c.stamp_at: block((bars[nm] if nm in bars else mk[nm]) + 2, stamp(c, nm))

    post = []
    for beta in range(5):
        endg = mk[f"B{beta+1}"] if beta < 3 else (mk["HB"] if beta == 3 else NG)
        for pi in ([2 * beta, 2 * beta + 1] if beta < 4 else [8]):
            for t in range(2):
                n = 2 * pi + t; tmp = 64 + 4 * (n % 12)
                cv = [f"v_cvt_pk_bf16_f32 v{tmp+2*h+k}, v{ACC2(2*pi+h, t)+2*k}, v{ACC2(2*pi+h, t)+2*k+1}" for h in range(2) for k in range(2)]
                st = [f"s_add_u32 s{sT[11]}, s{sPST}, {8192*n}", tagged(f"buffer_store_dwordx4 {vr(tmp)}, v{vL16}, {srd(SWS)}, s{sT[11]} offen {c.pflav}", "pst")]
                if endg >= NG: post += cv + st
                else: feed(lq1, endg + 3 + (n % 4) * (12 if beta < 3 else 0), cv, (lambda st: lambda g: push_vm(g + 1, g + 10, st[0], st[1]))(st))

    NP = 72; hdone = {}
    E = lambda P, s: vE[2 * (P % 3) + s]
    T = lambda P, s: ACC1(P // 8) + 2 * (P % 8) + s
    sq = []; st_ = dict(n=0, p1=None, p2=None)
    def h_out(k):
        def cb(g):
            hdone[k] = g
            for t in range(2):
                push_vm(g + 2 + 2 * t, g + 16, f"s_add_u32 s{sT[11]}, s{sHST}, {1024*(2*k+t)}",
                        tagged(f"buffer_store_dwordx4 {vr(Hreg(k)+4*t)}, v{vL16}, {srd(SWS)}, s{sT[11]} offen sc1", "hst"))
        return cb
    def pack(P):
        def cb(g):
            lq0.append((g + 1, I(f"v_cvt_pk_bf16_f32 v{Hreg(P//8)+P%8}, v{T(P, 0)}, v{T(P, 1)}"), None))
            if P % 8 == 7: lq0.extend((g + 2, I(f"v_permlane16_swap_b32 v{Hreg(P//8)+i}, v{Hreg(P//8)+4+i}"), h_out(P // 8) if i == 3 else None) for i in range(4))
        return cb
    def refill(g):
        if sq: return
        Pn, P1, P2 = st_["n"], st_["p1"], st_["p2"]
        ready = Pn < NP and g >= O + 36 * (Pn // 8 + 1) + 3
        if not ready and P1 is None and P2 is None: return
        add = lambda t, cb=None: sq.append((I(t), cb))
        if ready: add(f"v_exp_f32 v{E(Pn, 0)}, v{T(Pn, 0)}")
        if P1 is not None:
            for s in range(2): add(f"v_add_f32 v{E(P1, s)}, 1.0, v{E(P1, s)}")
        if ready: add(f"v_exp_f32 v{E(Pn, 1)}, v{T(Pn, 1)}")
        if P2 is not None:
            for s in range(2): add(f"v_mul_f32 v{T(P2, s)}, v{T(P2, s)}, v{E(P2, s)}", pack(P2) if s else None)
        if P1 is not None:
            for s in range(2): add(f"v_rcp_f32 v{E(P1, s)}, v{E(P1, s)}")
        st_.update(n=Pn + ready, p1=Pn if ready else None, p2=P1)
    un = lambda x: len(x) if isinstance(x, list) else (2 if x.kind == "T" else 1)
    isT = lambda x: not isinstance(x, list) and x.kind == "T"
    def ready(q, g): return [x for x in q[:4] if x[0] <= g] if q and q[0][0] <= g else []
    def take(g, cap, nmax, light_first=False):
        r = []; plain = False
        while len(r) < nmax and cap > 0:
            refill(g); src = None
            order = ([lq0, sq, lq1] if light_first else [sq, lq0, lq1])
            for q in order:
                if not q or (q is not sq and q[0][0] > g): continue
                x = q[0][0] if q is sq else q[0][1]
                if (isT(x) and plain) or (un(x) > cap and (r or q is sq)): continue
                src = q; break
            if src is None: break
            it = src.pop(0); x, cb = (it if src is sq else it[1:])
            r.append(x); cap -= un(x); plain = plain or not isT(x)
            if cb: cb(g)
        return r

    S.build(aRING, bars, lead32=c.lead32)
    nrd = [len(g.rd) for g in S.g]
    barg = set(bars.values())
    val = {}; vmat = {}; preat = {}; clear = set(); busy = set(); cnt = 0; lastvm = -9
    for g in range(NG):
        refill(g)
        dues = [z for z in vq if z[0] <= g]
        if dues:
            z = min(dues, key=lambda z: z[1]); vq.remove(z); vq.insert(0, z)
        due = bool(dues) and g not in barg
        if g < G2:
            cut = max(-1, nrd[g] + len(xrd.get(g, [])) - 2)
            nl = len(ready(lq0, g))
            urgent = due and vq[0][1] - g < 2 * sum(1 for z in vq if z[1] <= vq[0][1])
            Pn = st_["n"]
            behind = Pn < NP and g > O + 36 * (Pn // 8 + 1) + 3 + (9 * (Pn % 8)) // 2 + c.lagok
            if due and (g - lastvm >= 2 or urgent or (g < O + 38 and vq[0][3].tag == "w0")):
                it = vq.pop(0); vmat[g] = it; preat[g] = it[2]; lastvm = g
                store = it[3].kind == "VS" and "x4" in it[3].op
                if behind: val[g] = take(g, 2 if store else 4, 3, nl >= 3)
                else: val[g] = [] if store else take(g, 2 - cut, 2 - min(cut, 0), nl >= 2)
            else:
                if g % 3 and g not in barg and ready(lq1, g) and not isinstance(lq1[0][1], list) and lq1[0][1].kind == "S" and lq1[0][2] is None:
                    preat[g] = [lq1.pop(0)[1]]
                val[g] = take(g, 4 - cut, 3 - min(cut, 0), nl >= 3)
            continue
        if g in busy: continue
        work = bool(sq) or bool(ready(lq0, g))
        if due and (not work or vq[0][1] - g < 3 * sum(1 for z in vq if z[1] <= vq[0][1]) + 1):
            it = vq[0]; x = g + (2 if it[2] else 1)
            if x < NG and not (barg & set(range(g, x + 1))):
                vq.pop(0); vmat[x] = it; clear.add(x); busy.update(range(g, x + 1))
                if it[2]: preat[x if (g in blocks or g + 1 in blocks) else g] = it[2]
                continue
        cnt += 1
        if cnt % 7 == 0 or g in barg or g - 1 in barg: continue
        if work: val[g] = take(g, 2, 2, len(ready(lq0, g)) >= 2)
        elif ready(lq1, g) and isT(lq1[0][1]):
            if g + 1 not in barg and g + 1 < NG:
                val[g + 1] = take(g + 1, 2, 1); clear.add(g + 1); busy.add(g + 1)
        else: val[g] = take(g, 1, 1)
    assert not sq and st_["n"] == NP and st_["p1"] is None and st_["p2"] is None and not lq0
    rest = []
    while lq1:
        _, x, cb = lq1.pop(0); rest += flatten([x])
        if cb: cb(NG)
    post = [[it[2], it[3]] for it in vq if it[0] < NG] + rest + [[it[2], it[3]] for it in vq if it[0] >= NG] + post
    for g, lim, what in need: assert g <= lim, (what, g, lim)
    assert hdone[6] < mk["A0"] + 46 and hdone[7] < mk["L"] - 2 and hdone[8] < mk["L"] + 30, hdone
    for k in range(6): assert hdone[k] < O + 36 * (k + 3), hdone
    hlast = max(g for g, it in vmat.items() if it[3].tag == "hst")
    eH = min((b for b in bars if bars[b] > hlast + c.hlag), key=lambda b: bars[b])
    waits[eH].append(WAITV("hst"))
    after.setdefault(eH, []).extend([f"s_mov_b32 s{fa}, s{sFH}", flag_store(fa)])

    S.build(aRING, bars, lead32=c.lead32, clear=clear)
    for b, gi in bars.items():
        lastf = max(k for k, f in enumerate(S.frags) if f["at"] < gi)
        S.g[gi].pre += flatten([WAITR([S.frags[lastf]["regs"]]), waits[b], "s_barrier"])
        if b in after: S.g[gi].blocks = flatten([after[b]]) + S.g[gi].blocks
    for gi, it in vmat.items(): S.g[gi].vm.append(it[3])
    for gi, x in xrd.items(): S.g[gi].rd += x
    for gi, pre in preat.items(): S.g[gi].pre += pre
    for gi, l in val.items(): S.g[gi].val += flatten(l)
    for gi, l in blocks.items(): S.g[gi].blocks += l
    S.place_waits()
    inv = {v: k for k, v in pub.items()}
    for g, it in vmat.items():
        tg = it[3].tag
        if tg in inv: assert g < bars[inv[tg]], (tg, g)
        if tg in free: assert g > bars[free[tg]], (tg, g)
        if tg == "w0": assert g < B["E1"], g
    order = sorted(bars.values())
    for f in S.frags:
        nb = [x for x in order if f["after"] is None or x > bars[f["after"]]]
        if nb: assert f["at"] < nb[0], f
    late = {it[3].tag: (g, it[1]) for g, it in sorted(vmat.items()) if g > it[1]}
    assert not ({"t1st", "t2st", "f1", "f2", "fh", "cs"} & set(late)), late
    info.update(marks=mk, bars=bars, eH=eH, hdone=hdone, late=late, S=S)
    return S.emit() + flatten(post), info

def main_kernel(c):
    p = [prologue(c), layernorm(c), stamp(c, "B0")]
    body, info = main_stream(c)
    if c.pro: body = []
    p += [body, stamp(c, "last"), "s_waitcnt vmcnt(0)", stamp(c, "drained"), stamp_out(c), LABEL("L_exit"), "s_endpgm"]
    log = []
    prog = pad_hazards(resolve_waits(flatten(p), log), log)
    if not c.pro and not c.nover: verify_chains(prog)
    return prog, log, info

def reduce_kernel(c):
    p = []; a = p.append
    a("s_cmp_ge_u32 s2, 576\ns_cbranch_scc1 L_rexit")
    a("s_load_dwordx2 s[20:21], s[0:1], 0\ns_load_dwordx2 s[22:23], s[0:1], 48\ns_load_dwordx2 s[24:25], s[0:1], 64")
    a("v_lshrrev_b32 v8, 6, v0\nv_and_b32 v1, 63, v0\nv_readfirstlane_b32 s26, v8\nv_lshlrev_b32 v2, 4, v1")
    a("s_lshl_b32 s27, s2, 2\ns_add_u32 s27, s27, s26")
    a(f"s_mul_i32 s28, s27, 3641\ns_lshr_b32 s28, s28, 16\ns_mul_i32 s29, s28, 18\ns_sub_u32 s29, s27, s29")
    a("s_and_b32 s30, s28, 3\ns_bfe_u32 s31, s28, 0x10002\ns_lshr_b32 s32, s28, 3")
    a("s_and_b32 s33, s29, 1\ns_lshr_b32 s34, s29, 1")
    a("s_lshl_b32 s35, s34, 5\ns_mul_i32 s36, s31, 320\ns_add_u32 s36, s36, s35\ns_lshl_b32 s37, s31, 5\ns_add_u32 s37, s37, s35\ns_cmp_lt_u32 s34, 8\ns_cselect_b32 s36, s36, s37")
    a("s_lshl_b32 s37, s33, 10\ns_lshl_b32 s38, s32, 2\ns_add_u32 s37, s37, s38\ns_add_u32 s37, s37, s30\ns_mul_i32 s37, s37, 1152\ns_lshl_b32 s36, s36, 1\ns_add_u32 s36, s36, s37")
    a("v_and_b32 v3, 15, v1\nv_mul_u32_u24 v3, 73728, v3\nv_lshrrev_b32 v4, 4, v1\nv_lshl_add_u32 v3, v4, 4, v3")
    a(f"s_lshl_b32 s27, s27, 13\ns_add_u32 s27, s27, {PB}\ns_add_u32 s39, s27, 4096")
    a("s_waitcnt lgkmcnt(0)")
    a(mk_srd(4, 20, 2359296)); a(mk_srd(8, 22, 2359296)); a(mk_srd(12, 24, WS_END))
    for q in range(8):
        a(f"buffer_load_dwordx4 {vr(16+4*q)}, v2, s[12:15], s{27 if q < 4 else 39} offen offset:{1024*(q%4)}")
    a("buffer_load_dwordx4 v[8:11], v3, s[4:7], s36 offen")
    a("s_mov_b32 s40, 0x00003f80\ns_mov_b32 s41, 0x3f800000\ns_mov_b32 s42, 0xffff0000")
    for k in range(4): a(f"v_lshlrev_b32 v{48+2*k}, 16, v{16+k}\nv_and_b32 v{49+2*k}, s42, v{16+k}")
    for q in range(1, 8):
        for k in range(4): a(f"v_dot2c_f32_bf16 v{48+2*k}, s40, v{16+4*q+k}\nv_dot2c_f32_bf16 v{49+2*k}, s41, v{16+4*q+k}")
    for k in range(4): a(f"v_permlane32_swap_b32 v{48+k}, v{52+k}")
    for k in range(4): a(f"v_permlane16_swap_b32 v{48+k}, v{52+k}")
    a(f"s_mov_b32 s43, {fhex(-1/LOG2E)}")
    for k in range(4):
        a(f"v_lshlrev_b32 v12, 16, v{8+k}\nv_and_b32 v13, s42, v{8+k}\nv_fma_f32 v12, v{48+2*k}, s43, v12\nv_fma_f32 v13, v{49+2*k}, s43, v13\nv_cvt_pk_bf16_f32 v{56+k}, v12, v13")
    a("buffer_store_dwordx4 v[56:59], v3, s[8:11], s36 offen")
    a(["s_waitcnt vmcnt(0)", LABEL("L_rexit"), "s_endpgm"])
    return pad_hazards(resolve_waits(flatten(p)))

def descriptor(name, vgpr, accum, sgpr):
    return f""".amdhsa_kernel {name}
  .amdhsa_next_free_vgpr {vgpr}
  .amdhsa_next_free_sgpr {sgpr}
  .amdhsa_accum_offset {accum}
  .amdhsa_group_segment_fixed_size 0
  .amdhsa_kernarg_size 72
  .amdhsa_user_sgpr_count 2
  .amdhsa_user_sgpr_kernarg_segment_ptr 1
  .amdhsa_system_sgpr_workgroup_id_x 1
.end_amdhsa_kernel
"""

def generate(c):
    prog, log, info = main_kernel(c)
    red = reduce_kernel(c)
    k1, k2 = NAME + "_kernel", "reduce_kernel"
    s = f"""; Fused LayerNorm + 2-D spectral filter + SiLU feed-forward, generated by gen/gen.py.
; @launch kernel={k1} grid=(256,1,1) block=(256,1,1) lds=163840
; @launch kernel={k2} grid=(576,1,1) block=(256,1,1) lds=0
.amdgcn_target "amdgcn-amd-amdhsa--gfx950"
.text
.globl {k1}
.p2align 8
.type {k1},@function
{k1}:
{render(prog)}
.globl {k2}
.p2align 8
.type {k2},@function
{k2}:
{render(red)}
.section .rodata,"a"
.p2align 6
{descriptor(k1, 512, 256, 102)}.p2align 6
{descriptor(k2, 64, 64, 48)}"""
    return s, log, info, prog

if __name__ == "__main__":
    c = Cfg()
    if "nospec" in sys.argv: c.spectral = False
    if "stamps" in sys.argv: c.stamps = True; c.stamp_at = ["E0", "E2", "A0", "L", "GD", "B0"]
    for a_ in sys.argv:
        if a_.startswith("at="): c.stamp_at = a_[3:].split(",")
    if "cyc" in sys.argv: c.clk = "s_memtime"
    for a_ in sys.argv[2:]:
        if "=" in a_ and not a_.startswith("at="):
            k_, v_ = a_.split("="); assert hasattr(c, k_), k_; setattr(c, k_, int(v_) if v_.lstrip('-').isdigit() else v_)
    s, log, info, prog = generate(c)
    out = sys.argv[1]
    open(out, "w").write(s)
    from collections import Counter
    print("instructions", len(prog), Counter(i.kind for i in prog).most_common())
    print(info["marks"], info["bars"], info["eH"], info["x1"], info["hdone"], info["late"])
    if c.stamps: open(out + ".names", "w").write(" ".join(c.names))
    print(len(log), "log lines"); open("gen.log", "w").write("\n".join(log))
```

```python
import sys, struct
from asmlib import *
from sched import *

NAME = "parallel_sum__spectral_gfnet__dense_activation_silu__prompt"
LOG2E = 1.4426950408889634
def fhex(x): return "0x%08x" % struct.unpack("<I", struct.pack("<f", x))[0]

FL1, FL2, FLH, FLP = 0x1000, 0x2000, 0x3000, 0x8000
CS, GD, T1, T2, HB, PB, WS_END = 0x10000, 0x50000, 0x200000, 0x480000, 0x800000, 0x1A00000, 0x2C00000
OOB = 0x40000000
SP = 0
SLOT = [16384 + 36864 * k for k in range(4)]
WIN = [16384, 65536, 114688]
def win(addr):
    w = 0 if addr < WIN[1] else (1 if addr < WIN[2] else 2)
    return w, addr - WIN[w]
SX, SW1, SW2, SWS, SWR, SWI = 4, 8, 12, 16, 20, 24
sW, sMI, sFJ, sQ, sR, sB, sNON, sROT, sM0, sWG, sI, sXCD = 28, 29, 30, 31, 32, 33, 34, 35, 36, 37, 38, 39
sW1T, sW2T = 40, 58
sPR0, sKS0, sTAU1, sTAU2, sHST, sHLD, sPST, sFH, sSGN = 76, 77, 78, 79, 80, 81, 82, 83, 84
sT = list(range(86, 101))
sPR1 = sT[12]; sDBL = 85; sKAP2 = sXCD
PR1 = f"s_cmp_eq_u32 s{sFJ}, 8\ns_cselect_b32 s{sPR1}, 8, 17"
def srd(n): return f"s[{n}:{n+3}]"
vLANE, vL16, vL8, vDW1F, vDW1H, vDW2F, vDW2H = 1, 2, 3, 4, 5, 6, 7
vG1 = [[8, 9, 10], [11, 12, 13]]; vG1H = 14
vG2 = [[15 + 3 * n + k for k in range(3)] for n in range(4)]
vG2H = [[27, 28], [29, 30]]; vGDW2, vGDW1, vSGN = 31, 32, 33
vE = list(range(34, 40))
H0 = 40
def Hreg(k): return H0 + 8 * k
def RAWX(t, j): return 112 + 4 * (18 * t + j)
def ACC1(p): return 112 + 16 * (p % 3)
def ACC2(tile, t): return 248 - 8 * tile + 4 * t
vE1 = 40
vWR = [184, 200]; vWI = [220, 236]; vZ = [160, 168]; vZS = [216, 252]; vZA = [96, 100, 104, 108]; vPT = 176
aRING = [144 + 4 * k for k in range(8)]
aE3, aCS, aHP, aT2 = 240, 176, 0, 72
def vr(b, n=4): return f"v[{b}:{b+n-1}]"
def ar(b, n=4): return f"a[{b}:{b+n-1}]"
M16 = "v_mfma_f32_16x16x32_bf16"; M32 = "v_mfma_f32_32x32x16_bf16"
DPPSW = "quad_perm:[1,0,3,2] row_mask:0xf bank_mask:0xf"

def tagged(text, tag): return I(text, tag=tag)

def mk_srd(n, lo, size):
    return f"s_mov_b32 s{n}, s{lo}\ns_mov_b32 s{n+1}, s{lo+1}\ns_mov_b32 s{n+2}, {size}\ns_mov_b32 s{n+3}, 0x20000"

def cos8(dst, tmp, base, step, ks, sin_dst=None):
    o = []
    for half in range(2):
        for e in range(4):
            k = ks[4 * half + e]
            o.append(f"v_fmamk_f32 v{tmp+e}, v{step}, {fhex(k)}, v{base}" if k else f"v_mov_b32 v{tmp+e}, v{base}")
        if sin_dst is not None:
            for e in range(4): o.append(f"v_sin_f32 v{tmp+4+e}, v{tmp+e}")
        for e in range(4): o.append(f"v_cos_f32 v{tmp+e}, v{tmp+e}")
        if sin_dst is not None:
            for e in range(2): o.append(f"v_cvt_pk_bf16_f32 v{sin_dst+2*half+e}, v{tmp+4+2*e}, v{tmp+5+2*e}")
        for e in range(2): o.append(f"v_cvt_pk_bf16_f32 v{dst+2*half+e}, v{tmp+2*e}, v{tmp+1+2*e}")
    return o

def mod576(dst, t):
    return [f"v_mul_hi_u32 v{t}, v{dst}, s{sT[14]}", f"v_mul_u32_u24 v{t}, 576, v{t}", f"v_sub_u32 v{dst}, v{dst}, v{t}"]

def col_off(dst, tau):
    return f"s_cmp_lt_u32 s{tau}, 18\ns_cselect_b32 s{dst}, 2, -287\ns_lshl_b32 s{sT[13]}, s{tau}, 4\ns_add_i32 s{dst}, s{dst}, s{sT[13]}"

def spin(name, load, reg, nreg=1, sleep=True):
    cmpv = lambda: "\n".join([f"v_cmp_ne_u32 vcc, s{sNON}, v{reg}"] +
                             [f"v_cmp_ne_u32 s[{sT[10]}:{sT[10]+1}], s{sNON}, v{reg+k}\ns_or_b64 vcc, vcc, s[{sT[10]}:{sT[10]+1}]" for k in range(1, nreg)])
    return [WAITR([vr(reg, nreg) if nreg > 1 else f"v{reg}"]),
            RAW(f"""{cmpv()}
  s_cbranch_vccz L_{name}_ok
  s_mov_b32 s{sT[12]}, 0
L_{name}_spin:
  {'s_sleep 1' if sleep else 's_nop 0'}
  {load}
  s_waitcnt vmcnt(0)
  {cmpv()}
  s_cbranch_vccz L_{name}_ok
  s_add_u32 s{sT[12]}, s{sT[12]}, 1
  s_cmp_lt_u32 s{sT[12]}, 0x8000
  s_cbranch_scc1 L_{name}_spin
L_{name}_ok:
  s_nop 1""")]

def opt(name, cond, body):
    return [cond, f"s_cbranch_scc0 L_{name}", OPT_BEGIN(name), body, OPT_END(name), LABEL("L_" + name)]

def flag_store(off_s, tag="flag"):
    return [f"s_cmp_eq_u32 s{sW}, 0\ns_cselect_b32 s{off_s}, s{off_s}, {OOB}\nv_mov_b32 v0, s{sNON}",
            tagged(f"buffer_store_dword v0, off, {srd(SWS)}, s{off_s} sc1", tag)]

STREG = [101, 100, 24, 25, 26, 27, 52, 53, 55, 56, 57]
def stamp(c, name, fine=False):
    if not c.stamps or (fine and not c.pro): return []
    if c.pro: STREG[:] = [101] + list(range(59, 76))
    k = len(c.names); c.names.append(name)
    lo = 100 if k == 0 else 0
    return [RAW(f"s_waitcnt lgkmcnt(0)\n  {c.clk} s[{lo}:{lo+1}]\n  s_waitcnt lgkmcnt(0)\n  s_mov_b32 s{STREG[k]}, s{lo}")]
def stamp_out(c):
    if not c.stamps and not c.prof: return []
    t = "\n  ".join(f"v_writelane_b32 v8, s{STREG[k]}, {k}" for k in range(len(c.names))) if c.stamps else "v_mov_b32 v8, v4"
    return [RAW(f"""{t}
  s_lshl_b32 s0, s{sWG}, 10
  s_lshl_b32 s1, s{sW}, 8
  s_add_u32 s0, s0, s1
  s_add_u32 s0, s0, {WS_END}
  v_lshlrev_b32 v0, 2, v{vLANE}
  s_mov_b32 s{SWS+2}, {WS_END + 0x40000}
  buffer_store_dword v8, v0, {srd(SWS)}, s0 offen""")]
class Cfg:
    spectral = True
    stamps = False
    dense = True
    xfirst = 3
    pro = 0
    xstart = 180
    xstep = 55
    pf2at = 54
    pfa = 5
    f1at = 176
    x1lag = 24
    f2pub = 'E3'
    f2at = 250
    wspan = 30
    prof = ''
    inred = 1
    hstep = 3
    hmargin = 50
    lagok = 3
    lead32 = 7
    bar32 = 5
    nover = 0
    e3at = 100
    hlag = 36
    pflav = 'sc1'
    nearly = 6
    nlate = 4
    dma_from = 2
    e3early = 1
    xslow = 8
    xfast = 14
    prefetch = True
    names = []
    clk = 's_memrealtime'
    stamp_at = []

def dma_w1(beta, half, i, tag):
    lds = SLOT[2 * (beta & 1) + half] + 4096 * i - 128 * beta
    return [f"s_add_u32 m0, s{sM0}, {lds}",
            tagged(f"buffer_load_dwordx4 v{vDW1F}, {srd(SW1)}, s{sW1T+9*half+i} offen offset:{128*beta} lds", tag)]

vXO = [104, 105, 106, 107]
vXR = [108, 109, 110, 111]
vFD = [80 + 4 * n for n in range(5)]; vFD2 = [56, 60, 64, 68, 100]
vSQ = [72, 73, 74, 75, 76, 77, 78, 79]
aSUM, aSEL, aONE = 144, 160, 168
aFD = [176 + 4 * k for k in range(8)]
vCM, vD, vLO, vHI, vRS = 8, [24, 56], 80, 96, 72

sXL, sXG, sX1, sX0 = sPST, sHST, sHLD, sFH
def x_line(L):
    o = [f"s_add_u32 m0, s{sXL}, {4096*L}", f"s_add_u32 s{sXG}, s{sXG}, 128\ns_cmp_eq_u32 s{sXG}, s{sX1}\ns_cselect_b32 s{sXG}, s{sX0}, s{sXG}" if L else "s_nop 0"]
    return o + [tagged(f"buffer_load_dwordx4 v{vXO[rg]}, {srd(SX)}, s{sXG} offen offset:{1024*rg} lds", f"x{L}") for rg in range(4)]

def fd_frags(pair, regs):
    o = [f"s_cmp_lt_u32 s{pair}, 9\ns_cselect_b32 s{sT[5]}, 2, -287\ns_lshl_b32 s{sT[6]}, s{pair}, 5\ns_add_i32 s{sT[5]}, s{sT[5]}, s{sT[6]}",
         f"s_lshl_b32 s{sT[6]}, s{sROT}, 1\ns_add_u32 s{sT[6]}, s{sT[6]}, s{sW}\ns_lshl_b32 s{sT[6]}, s{sT[6]}, 4",
         f"v_and_b32 v16, 30, v{vLANE}\nv_add_u32 v16, s{sT[5]}, v16\nv_lshrrev_b32 v17, 5, v{vLANE}\nv_lshl_add_u32 v17, v17, 3, s{sT[6]}\nv_mul_u32_u24 v17, v16, v17",
         mod576(17, 19), "v_lshlrev_b32 v18, 6, v16", mod576(18, 19),
         f"v_and_b32 v19, 1, v{vLANE}\nv_cvt_f32_u32 v19, v19\nv_mul_f32 v19, 0x3e800000, v19",
         f"v_cvt_f32_u32 v16, v16\nv_cvt_f32_u32 v17, v17\nv_cvt_f32_u32 v18, v18\nv_mul_f32 v16, {fhex(1/576)}, v16\nv_fmamk_f32 v17, v17, {fhex(1/576)}, v19\nv_mul_f32 v18, {fhex(1/576)}, v18"]
    chunks = [o]
    for n in range(5):
        chunks.append([cos8(regs[n], 22, 17, 16, range(8)), "v_add_f32 v17, v17, v18" if n < 4 else None])
    return chunks
def fd_write(regs, base):
    o = [f"s_add_u32 s{sT[5]}, s{sM0}, {base}\nv_add_u32 v0, s{sT[5]}, v{vL16}\ns_cmp_ge_u32 s{sW}, 2\ns_cselect_b32 s{sT[6]}, {SLOT[3]+16384-base-16384}, 0\nv_add_u32 v75, s{sT[6]}, v0"]
    for n in range(5): o.append(tagged(f"ds_write_b128 v{0 if n < 4 else 75}, {vr(regs[n])} offset:{4096*n}", "fd"))
    return o

def weave(ops, inserts, when):
    def safe(i):
        for x in ops[i:]:
            if x.op.startswith(SCC_R): return False
            if x.kind == "S" and not x.op.startswith(SCC_KEEP): return True
        return True
    out = []; t = 0; k = 0; depth = 0
    for i, x in enumerate(ops):
        if x.kind == "MARK":
            while k < len(inserts) and inserts[k][0] <= x.arg: out += inserts[k][1]; k += 1
            continue
        if k < len(inserts) and depth == 0 and t >= when[k] and x.kind not in ("OB", "OE", "LABEL") and safe(i):
            out += inserts[k][1]; k += 1
        out.append(x)
        if x.kind == "OB": depth += 1
        if x.kind == "LABEL": depth = 0
        if depth == 0: t += 2 if x.kind == "T" else 1
    for ins in inserts[k:]: out += ins[1]
    return out

def late_setup():
    u0, u1, u2 = sT[8], sT[9], sT[13]
    t = [f"""v_lshrrev_b32 v34, 3, v{vLANE}
s_lshl_b32 s{u0}, s{sW}, 3
v_add_u32 v35, s{u0}, v34
v_bfe_u32 v34, v34, 1, 1
v_bfe_u32 v36, v35, 4, 1
v_lshl_add_u32 v36, v36, 1, v34
v_lshlrev_b32 v36, 1, v36
v_and_b32 v34, 7, v{vLANE}
v_xor_b32 v36, v36, v34
v_mul_u32_u24 v{vDW2F}, 1152, v35
v_lshl_add_u32 v{vDW2F}, v36, 4, v{vDW2F}
s_mul_i32 s{u0}, s{sR}, 640
v_add_u32 v{vDW2F}, s{u0}, v{vDW2F}
v_lshrrev_b32 v34, 2, v{vLANE}
v_and_b32 v36, 3, v{vLANE}
s_and_b32 s{u2}, s{sW}, 1
s_lshl_b32 s{u1}, s{u2}, 4
v_add_u32 v35, s{u1}, v34
v_mul_u32_u24 v{vDW1H}, 9216, v35
v_lshl_add_u32 v{vDW1H}, v36, 4, v{vDW1H}
s_mul_i32 s{u0}, s{sFJ}, 576
s_lshl_b32 s{u1}, s{sR}, 9
s_sub_u32 s{u0}, s{u0}, s{u1}
s_add_u32 s{u0}, s{u0}, 512
v_add_u32 v{vDW1H}, s{u0}, v{vDW1H}
s_lshl_b32 s{u2}, s{u2}, 1
v_xor_b32 v36, s{u2}, v36
v_mul_u32_u24 v{vDW2H}, 1152, v35
v_lshl_add_u32 v{vDW2H}, v36, 4, v{vDW2H}
s_lshl_b32 s{u0}, s{sR}, 6
s_add_u32 s{u0}, s{u0}, 512
v_add_u32 v{vDW2H}, s{u0}, v{vDW2H}"""]
    sc = []
    for side in range(2):
        sc.append(f"s_xor_b32 s{u0}, s{sFJ}, {side}\ns_and_b32 s{u1}, s{u0}, 1\ns_mul_i32 s{u0}, s{u0}, 288\ns_lshl_b32 s{u2}, s{u1}, 5\ns_add_u32 s{u2}, s{u2}, s{u0}\ns_mul_i32 s{u2}, s{u2}, 1152")
        for k in range(8): sc.append(f"s_add_u32 s{sW2T+9*side+k}, s{u2}, {36864*k}")
        sc.append(f"s_lshl_b32 s{u1}, s{u1}, 8\ns_sub_u32 s{u0}, s{u0}, s{u1}\ns_add_u32 s{u0}, s{u0}, 256\ns_mul_i32 s{sW2T+9*side+8}, s{u0}, 1152")
    sc.append(f"s_lshl_b32 s{u0}, s{sMI}, 4\ns_add_u32 s{u1}, s{u0}, s{sFJ}\ns_xor_b32 s{u1}, s{u1}, 1\ns_lshl_b32 s{u1}, s{u1}, 2\ns_add_u32 s{u1}, s{u1}, s{sW}\ns_mul_i32 s{u1}, s{u1}, 18432\ns_add_u32 s{sHLD}, s{u1}, {HB}")
    sc.append(f"s_lshl_b32 s{u0}, s{sMI}, 1\ns_add_u32 s{u0}, s{u0}, s{sR}\ns_lshl_b32 s{u0}, s{u0}, 2\ns_add_u32 s{u0}, s{u0}, s{sW}\ns_mul_i32 s{u0}, s{u0}, {18*8192}\ns_lshl_b32 s{u1}, s{sQ}, 10\ns_add_u32 s{u0}, s{u0}, s{u1}\ns_add_u32 s{sPST}, s{u0}, {PB}")
    sc.append(f"s_lshl_b32 s{sFH}, s{sMI}, 3\ns_add_u32 s{sFH}, s{sFH}, s{sQ}\ns_lshl_b32 s{sFH}, s{sFH}, 7\ns_lshl_b32 s{u0}, s{sR}, 2\ns_add_u32 s{sFH}, s{sFH}, s{u0}\ns_add_u32 s{sFH}, s{sFH}, {FLH}")
    hst = f"s_lshl_b32 s{sHST}, s{sMI}, 4\ns_add_u32 s{sHST}, s{sHST}, s{sFJ}\ns_lshl_b32 s{sHST}, s{sHST}, 2\ns_add_u32 s{sHST}, s{sHST}, s{sW}\ns_mul_i32 s{sHST}, s{sHST}, 18432\ns_add_u32 s{sHST}, s{sHST}, {HB}"
    return flatten(t), flatten(sc), flatten([hst])

def e3_table(tmp, g, i, a0, a1, a2):
    K16 = [16 * (e >> 2) + (e & 3) for e in range(8)]
    o = [f"v_and_b32 v{i}, 15, v{vLANE}\nv_lshrrev_b32 v{g}, 4, v{vLANE}\nv_lshlrev_b32 v{a0}, 2, v{g}\nv_cvt_f32_u32 v{a0}, v{a0}"]
    for t in range(2):
        o.append(f"v_add_u32 v{a1}, {16*t}, v{i}\nv_lshlrev_b32 v{a1}, 6, v{a1}\nv_add_u32 v{a1}, s{sB}, v{a1}\nv_cvt_f32_u32 v{a1}, v{a1}\nv_mul_f32 v{a1}, {fhex(1/2048)}, v{a1}\nv_mul_f32 v{a2}, v{a1}, v{a0}")
        o.append(cos8(tmp + 8, tmp, a2, a1, K16, sin_dst=tmp + 12))
        for e in range(4): o.append(f"v_accvgpr_write_b32 a{aE3+4*t+e}, v{tmp+8+e}\nv_accvgpr_write_b32 a{aE3+8+4*t+e}, v{tmp+12+e}")
    return flatten(o)

def prologue(c):
    p = []; a = p.append
    a(f"s_cmp_ge_u32 s2, 256\ns_cbranch_scc1 L_exit\ns_mov_b32 s{sWG}, s2"); a(stamp(c, "start"))
    a(f"s_load_dwordx4 s[88:91], s[0:1], 0\ns_load_dwordx2 s[92:93], s[0:1], 16\ns_load_dwordx4 s[96:99], s[0:1], 32\ns_load_dwordx2 s[94:95], s[0:1], 64\ns_load_dwordx2 s[2:3], s[0:1], 48")
    a(f"v_lshrrev_b32 v8, 6, v0\nv_and_b32 v{vLANE}, 63, v0\nv_readfirstlane_b32 s{sW}, v8")
    a(f"s_and_b32 s{sXCD}, s{sWG}, 7\ns_lshr_b32 s{sI}, s{sWG}, 3")
    a(f"s_lshr_b32 s{sFJ}, s{sXCD}, 1\ns_lshl_b32 s{sFJ}, s{sFJ}, 2\ns_and_b32 s86, s{sI}, 3\ns_add_u32 s{sFJ}, s{sFJ}, s86")
    a(f"s_and_b32 s{sMI}, s{sXCD}, 1\ns_lshl_b32 s{sMI}, s{sMI}, 3\ns_lshr_b32 s87, s{sI}, 2\ns_add_u32 s{sMI}, s{sMI}, s87")
    a(f"s_lshr_b32 s{sQ}, s{sFJ}, 1\ns_and_b32 s{sR}, s{sFJ}, 1\ns_lshl_b32 s{sB}, s{sMI}, 2\ns_add_u32 s{sB}, s{sB}, s{sW}")
    a(f"s_mul_i32 s{sROT}, s86, 5\ns_and_b32 s{sROT}, s{sROT}, 0xfe")
    a(f"s_lshl_b32 s{sM0}, s{sW}, 10")
    a(f"v_lshlrev_b32 v{vL16}, 4, v{vLANE}\nv_lshlrev_b32 v{vL8}, 3, v{vLANE}")
    a(f"""v_lshrrev_b32 v12, 3, v{vLANE}
v_and_b32 v14, 7, v{vLANE}
v_lshrrev_b32 v15, 1, v12
v_xor_b32 v15, v15, v14
v_mul_u32_u24 v16, 73728, v12
v_lshl_add_u32 v{vXO[0]}, v15, 4, v16
v_xor_b32 v15, 4, v15
v_lshl_add_u32 v{vXO[1]}, v15, 4, v16
v_add_u32 v{vXO[2]}, {2*588800}, v{vXO[0]}
v_add_u32 v{vXO[3]}, {3*588800}, v{vXO[1]}
v_add_u32 v{vXO[1]}, 588800, v{vXO[1]}""")
    a(f"s_mul_i32 s{sXL}, s{sW}, 36864\ns_add_u32 s{sXL}, s{sXL}, {SLOT[0]}")
    a(f"s_mul_i32 s{sX0}, s{sB}, 1152\ns_add_u32 s{sX1}, s{sX0}, 1152\ns_lshl_b32 s{sXG}, s{sROT}, 6\ns_add_u32 s{sXG}, s{sXG}, s{sX0}")
    a("s_waitcnt lgkmcnt(0)")
    a(mk_srd(SX, 88, 2359296))
    for L in range(c.xfirst): a(x_line(L))
    a("s_getpc_b64 s[86:87]"); a(LABEL("L_pc"))
    a(f"""s_lshl_b32 s100, s{sI}, 11
v_lshrrev_b32 v17, 4, v0
v_lshl_add_u32 v17, v17, 7, s100
v_min_u32 v17, L_exit-L_pc, v17
v_mov_b32 v19, s87
v_add_co_u32 v18, vcc, s86, v17
v_addc_co_u32 v19, vcc, 0, v19, vcc""")
    a(tagged("global_load_dword a208, v[18:19], off", "pf"))
    a(mk_srd(SWR, 90, 1183744)); a(mk_srd(SWI, 92, 1183744))
    a(mk_srd(SWS, 94, WS_END))
    a(mk_srd(SW1, 96, 5308416)); a(mk_srd(SW2, 98, 5308416))
    a(f"s_mov_b32 s{sT[14]}, {(2**32 + 575)//576}")
    a(stamp(c, "issued", True))
    ch = []
    ch.append(f"""s_lshl_b32 s{sT[5]}, s{sW}, 3
v_add_u32 v13, s{sT[5]}, v12
v_bfe_u32 v15, v12, 1, 1
v_lshlrev_b32 v16, 2, v15
v_xor_b32 v16, v16, v14
v_mul_u32_u24 v{vDW1F}, 9216, v13
v_lshl_add_u32 v{vDW1F}, v16, 4, v{vDW1F}
s_mul_i32 s{sT[5]}, s{sFJ}, 576
s_lshl_b32 s{sT[6]}, s{sR}, 6
s_add_u32 s{sT[6]}, s{sT[6]}, s{sT[5]}
v_add_u32 v{vDW1F}, s{sT[6]}, v{vDW1F}
v_and_b32 v12, 31, v{vLANE}
v_lshrrev_b32 v13, 5, v{vLANE}
v_bfe_u32 v14, v12, 1, 3
v_xor_b32 v14, v14, v13
v_lshlrev_b32 v15, 7, v12
v_add_u32 v15, s{sXL}, v15""" + "".join(f"\nv_xor_b32 v16, {2*k}, v14\nv_lshl_add_u32 v{vXR[k]}, v16, 4, v15" for k in range(4)))
    sel = f"""v_and_b32 v14, 1, v{vLANE}
v_lshlrev_b32 v14, 4, v14
v_mov_b32 v15, 0x3f80
v_lshlrev_b32 v14, v14, v15
v_bfe_u32 v15, v{vLANE}, 2, 1
v_cmp_eq_u32 vcc, v15, v13
v_bfe_u32 v15, v{vLANE}, 1, 1
v_cndmask_b32 v14, 0, v14, vcc
v_bfe_u32 v16, v{vLANE}, 3, 2
v_lshl_add_u32 v15, v16, 1, v15
s_mov_b32 s{sSGN}, 0x3f803f80"""
    for j in range(8): sel += f"\nv_cmp_eq_u32 vcc, {j}, v15\nv_mov_b32 v{vSQ[j]}, 0\ns_nop 0\nv_cndmask_b32 v16, 0, v14, vcc\nv_accvgpr_write_b32 a{aSEL+j}, v16"
    ch.append(sel)
    t = f"s_mul_i32 s{sW1T}, s{sROT}, 294912"
    for j in range(1, 18): t += f"\ns_add_u32 s{sW1T+j}, s{sW1T+j-1}, 294912\ns_cmp_eq_u32 s{sW1T+j}, 5308416\ns_cselect_b32 s{sW1T+j}, 0, s{sW1T+j}"
    ch.append(t)
    u0 = sT[5]
    t = [f"s_cmp_ge_u32 s{sFJ}, 8\ns_addc_u32 s{sPR0}, s{sFJ}, 0\ns_lshl_b32 s{sKS0}, s{sQ}, 1"]
    for th in (0, 2): t.append(f"s_cmp_gt_u32 s{sQ}, {th}\ns_addc_u32 s{sKS0}, s{sKS0}, 0")
    u1 = sT[6]
    t.append(f"""s_lshr_b32 s{u0}, s{sI}, 2
s_sub_u32 s{u1}, s{sI}, s{u0}
s_sub_u32 s{u1}, s{u1}, 1
s_max_i32 s{u1}, s{u1}, 0
s_cmp_ge_u32 s{sXCD}, 4
s_cselect_b32 s{sTAU1}, s{u1}, s{sI}
s_add_u32 s{u1}, s{u0}, 24
s_lshr_b32 s{u0}, s{u0}, 1
s_add_u32 s{u0}, s{u0}, 32
s_bitcmp1_b32 s{sI}, 0
s_cselect_b32 s{sTAU2}, s{u0}, s{u1}
s_and_b32 s{u0}, s{sI}, 7
s_cmp_eq_u32 s{u0}, 3
s_cselect_b32 s{sDBL}, 1, 0
s_and_b32 s{u0}, s{sFJ}, 11
s_cmp_eq_u32 s{u0}, 10
s_cselect_b32 s{sDBL}, 1, s{sDBL}""")
    ch.append(t)
    ls = late_setup(); ch.append([ls[0], ls[1][:36] if not c.pro else None])
    if c.spectral: ch += tables(c)
    ch.append(prefetch_setup(c))
    def stats(L):
        rd = [WAITV(f"x{L}")] + [f"ds_read_b128 {vr(112+16*L+4*k)}, v{vXR[k]} offset:{4096*L}" for k in range(4)]
        st = []
        for k in range(4):
            r = 112 + 16 * L + 4 * k
            if k == 0: st.append(WAITR([vr(r + 12)]))
            for i in range(4): st += [f"v_dot2c_f32_bf16 v{vSQ[i]}, v{r+i}, v{r+i}", f"v_dot2c_f32_bf16 v{vSQ[4+i]}, s{sSGN}, v{r+i}"]
        return rd, st
    work = flatten(ch)
    ntab = sum(2 if x.kind == "T" else 1 for x in work if x.kind not in ("OB", "OE", "LABEL")) - (170 if c.spectral else 0)
    prev = None; tail = []
    for L in range(9):
        rd, st = stats(L)
        tail += flatten([I(f"; line {L}", kind="MARK", arg=L), rd, prev]); prev = st
    tail += flatten(prev)
    rest = []
    for L in range(c.xfirst, 9):
        x = flatten(x_line(L)); rest += [(L, x[:-3]), (L, [x[-3]]), (L, [x[-2]]), (L, [x[-1]])]
    when = []; t = c.xstart
    for k in range(len(rest)):
        when.append(t); t += c.xstep if k < c.xslow else c.xfast
    rest.append((9, [tagged(f"buffer_load_dword a215, off, {srd(SWS)}, 0 sc1", "non")])); when.append(t)
    a(weave(work + flatten(stamp(c, "tables", True)) + tail, rest, when))
    a(stamp(c, "xland", True))
    c.late = ls[1][36:] + ls[2]
    return p

vPF1, vPFW, sPFH, sPFW = 8, 10, sT[10], sT[11]
def prefetch_setup(c):
    u, v = sPFH, sPFW
    return f"""s_and_b32 s{u}, s{sMI}, 7
s_lshl_b32 s{u}, s{u}, 2
s_add_u32 s{u}, s{u}, s{sW}
s_mul_i32 s{u}, s{u}, {18*9216}
s_mul_i32 s{v}, s{sFJ}, 576
s_add_u32 s{u}, s{u}, s{v}
v_min_u32 v{vPF1}, 17, v{vLANE}
v_mul_u32_u24 v{vPF1}, 9216, v{vPF1}
v_add_u32 v{vPF1}, s{u}, v{vPF1}
s_lshl_b32 s{u}, s{sI}, 6
s_lshl_b32 s{v}, s{sXCD}, 2
s_add_u32 s{u}, s{u}, s{v}
s_mul_i32 s{u}, s{u}, 578
s_mul_i32 s{v}, s{sW}, 640
s_add_u32 s{v}, s{u}, s{v}
v_min_u32 v{vPFW}, 9, v{vLANE}
v_mul_u32_u24 v9, 52, v{vPFW}
v_lshrrev_b32 v9, 8, v9
v_mul_u32_u24 v9, {18496-640}, v9
v_lshl_add_u32 v{vPFW}, v{vPFW}, 7, v9
s_lshl_b32 s{u}, s{sR}, 6"""
def pf_w1(beta):
    if beta < 4: return [tagged(f"buffer_load_dword a{209+beta}, v104, {srd(SW1)}, s{sPFH} offen offset:{128*beta}", "pf")]
    return [f"s_lshl_b32 s{sPFH}, s{sR}, 9\ns_sub_u32 s{sPFH}, 512, s{sPFH}", tagged(f"buffer_load_dword a213, v104, {srd(SW1)}, s{sPFH} offen", "pf")]
def pf_w():
    return [tagged(f"buffer_load_ushort a{216+k}, v105, {srd(x)}, s{sPFW} offen", "pf") for k, x in enumerate((SWR, SWI))]

def tables(c):
    ch = fd_frags(sPR0, vFD)
    ch.append(opt("fd2", heavy1(), [PR1, fd_frags(sPR1, vFD2)]))
    K16 = [16 * (e >> 2) + (e & 3) for e in range(8)]
    pre = f"v_and_b32 v12, 15, v{vLANE}\nv_lshrrev_b32 v13, 4, v{vLANE}\nv_lshrrev_b32 v17, 5, v{vLANE}\nv_lshlrev_b32 v17, 8, v17\nv_add_u32 v17, s{sB}, v17\nv_cvt_f32_u32 v17, v17\nv_mul_f32 v17, {fhex(1/2048)}, v17\nv_and_b32 v18, 31, v{vLANE}\nv_cvt_f32_u32 v18, v18\nv_mul_f32 v19, v18, v17"
    for st in range(2):
        ch.append([pre if st == 0 else None, cos8(vE1 + 4 * st, 22, 19, 18, [st / 2 + (e >> 2) / 4 + (e & 3) / 32 for e in range(8)], sin_dst=vE1 + 8 + 4 * st)])
    if c.e3early: ch.append(e3_table(22, 13, 12, 17, 18, 19))
    u0, u1, u2, u3, u4 = sT[5], sT[6], sT[7], sT[8], sT[9]
    o = [f"s_and_b32 s{u0}, s{sB}, 1\ns_lshl_b32 s{u0}, s{u0}, 5\ns_bfe_u32 s{u1}, s{sB}, 0x20001\ns_lshl_b32 s{u1}, s{u1}, 4\ns_bitcmp1_b32 s{sB}, 3\ns_cselect_b32 s{u2}, {fhex(-0.25)}, 0"]
    o.append(f"v_add_u32 v18, s{u1}, v12\nv_cvt_f32_u32 v18, v18\nv_mul_f32 v18, {fhex(1/64)}, v18\nv_lshl_add_u32 v19, v13, 2, s{u0}\nv_cvt_f32_u32 v19, v19\nv_fma_f32 v19, v19, v18, s{u2}")
    o.append(cos8(30, 22, 19, 18, K16))
    o.append(f"s_lshl_b32 s{u0}, s{sFJ}, 14\ns_lshl_b32 s{u1}, s{sB}, 10\ns_add_u32 s{u0}, s{u0}, s{u1}\ns_add_u32 s{u0}, s{u0}, {CS}\ns_cmp_lt_u32 s{sB}, 16\ns_cselect_b32 s{u0}, s{u0}, {OOB}")
    o.append(tagged(f"buffer_store_dwordx4 v[30:33], v{vL16}, {srd(SWS)}, s{u0} offen sc1", "tab"))
    ch.append(o)
    o = [f"s_mul_i32 s{u0}, s{sB}, 57\ns_lshr_b32 s{u0}, s{u0}, 10\ns_mul_i32 s{u1}, s{u0}, 18\ns_sub_u32 s{u1}, s{sB}, s{u1}"]
    o.append(f"s_lshl_b32 s{u2}, s{u1}, 4\ns_mul_i32 s{u3}, s{sR}, 320\ns_add_u32 s{u3}, s{u3}, s{u2}\ns_lshl_b32 s{u4}, s{sR}, 5\ns_add_u32 s{u4}, s{u4}, s{u2}\ns_cmp_lt_u32 s{u1}, 16\ns_cselect_b32 s{u3}, s{u3}, s{u4}")
    o.append(f"s_add_u32 s{u0}, s{u0}, s{sKS0}\ns_lshl_b32 s{u0}, s{u0}, 1"); o.append(col_off(u4, u0))
    o.append(f"v_add_u32 v17, s{u3}, v12\nv_lshl_add_u32 v18, v13, 2, s{u4}\nv_mov_b32 v26, {fhex(2/(2048*576))}\nv_mov_b32 v27, {fhex(1/(2048*576))}")
    for k in range(4):
        o.append(f"v_add_u32 v19, {16*(k>>1) + 2*(k&1)}, v18\nv_cmp_eq_u32 vcc, 0x120, v19\nv_mul_u32_u24 v19, v19, v17"); o.append(mod576(19, 20))
        o.append(f"v_cndmask_b32 v20, v26, v27, vcc\nv_cvt_f32_u32 v19, v19\nv_mul_f32 v22, {fhex(1/576)}, v19\nv_add_f32 v23, 0x3e800000, v22\nv_cos_f32 v22, v22\nv_cos_f32 v23, v23\nv_mul_f32 v22, v22, v20\nv_mul_f32 v23, v23, v20")
        o.append(f"v_cvt_pk_bf16_f32 v{34+k}, v22, v23")
    o.append(f"s_mul_i32 s{u0}, s{sFJ}, 55296\ns_lshl_b32 s{u1}, s{sB}, 10\ns_add_u32 s{u0}, s{u0}, s{u1}\ns_add_u32 s{u0}, s{u0}, {GD}\ns_cmp_lt_u32 s{sB}, 54\ns_cselect_b32 s{u0}, s{u0}, {OOB}")
    o.append(tagged(f"buffer_store_dwordx4 v[34:37], v{vL16}, {srd(SWS)}, s{u0} offen sc1", "tab"))
    ch.append(o)
    return ch

def w_loads(rnd, js):
    p = []
    for j in js:
        for r in range(4):
            p.append(f"s_mov_b32 s{sT[2*rnd]}, {(16*j + r)*18496}")
            p.append(tagged(f"buffer_load_ushort v{vWR[rnd]+4*j+r}, v73, {srd(SWR)}, s{sT[2*rnd]} offen", f"w{rnd}"))
            p.append(tagged(f"buffer_load_ushort v{vWI[rnd]+4*j+r}, v73, {srd(SWI)}, s{sT[2*rnd]} offen", f"w{rnd}"))
    return p
def w_addr(tau, kap):
    return [col_off(sT[1], tau), f"""s_lshl_b32 s{sT[2]}, s{kap}, 2
s_add_u32 s{sT[2]}, s{sT[2]}, s{sW}
s_mul_i32 s{sT[2]}, s{sT[2]}, 578
s_lshl_b32 s{sT[1]}, s{sT[1]}, 1
s_add_u32 s{sT[1]}, s{sT[1]}, s{sT[2]}
v_lshrrev_b32 v73, 4, v{vLANE}
v_mul_u32_u24 v73, 73984, v73
v_and_b32 v79, 14, v{vLANE}
v_lshl_add_u32 v73, v79, 1, v73
v_add_u32 v73, s{sT[1]}, v73"""]

def layernorm(c):
    p = []; a = p.append
    a(["s_waitcnt lgkmcnt(0)", "s_barrier"])
    dm = [dma_w1(0, h, i, "blk0") for h in range(2) for i in range(9)]
    a(stamp(c, "bx", True))
    a(f"v_mov_b32 v104, v{vPF1}\nv_mov_b32 v105, v{vPFW}")
    if c.prefetch: a(pf_w1(0))
    v, m = 74, 78
    a("v_add_f32 v72, v72, v73\nv_add_f32 v76, v76, v77\nv_add_f32 v74, v74, v75\nv_add_f32 v78, v78, v79\nv_add_f32 v74, v72, v74\nv_add_f32 v78, v76, v78")
    a("v_mov_b32 v72, v74\nv_mov_b32 v76, v78\ns_nop 0\nv_permlane32_swap_b32 v72, v74\nv_permlane32_swap_b32 v76, v78\nv_add_f32 v74, v74, v72\nv_add_f32 v78, v78, v76")
    a(f"v_mul_f32 v{m}, {fhex(1/576)}, v{m}")
    rb = lambda r: f"v_cvt_pk_bf16_f32 v{r}, v{r}, v{r}\nv_lshlrev_b32 v{r}, 16, v{r}"
    a(f"v_mul_f32 v{v}, {fhex(1/576)}, v{v}\nv_fma_f32 v{v}, -v{m}, v{m}, v{v}\nv_max_f32 v{v}, 0, v{v}"); a(rb(m))
    fin = flatten([rb(v), f"v_add_f32 v{v}, {fhex(1e-5)}, v{v}", rb(v), f"v_sqrt_f32 v{v}, v{v}", rb(v), f"v_rcp_f32 v{v}, v{v}\nv_mul_f32 v{vRS}, {fhex(-LOG2E)}, v{v}"])
    for k in range(16):
        a(f"v_xor_b32 v{vCM+k}, 0x80000000, v{m}")
        if fin: a(fin.pop(0))
    late = list(c.late)
    assert not fin
    def unpack(pp):
        D = vr(vD[pp & 1], 16)
        return [f"{M32} {D}, {ar(aSEL)}, {vr(112+8*pp)}, {vr(vCM, 16)}", f"{M32} {D}, {ar(aSEL+4)}, {vr(116+8*pp)}, {D}"]
    a(stamp(c, "head", True))
    u = unpack(0); a(u[0])
    fw = []
    if c.spectral:
        a(opt("fdw2", heavy1(), [fd_write(vFD2, SLOT[2] + 18432), WAITL("fd")]))
        fw = flatten(fd_write(vFD, SLOT[2])); a(fw[:-5]); fw = fw[-5:]
        a(f"v_add_u32 v74, {SLOT[2]}, v{vL16}")
    a(u[1]); a(late[:12]); late = late[12:]
    for pp in range(18):
        mf = unpack(pp + 1) if pp + 1 < 18 else [None, None]
        D = vD[pp & 1]
        vo = [f"v_mul_f32 v{D+i}, v{D+i}, v{vRS}" for i in range(16)]
        vo += [f"v_cvt_pk_bf16_f32 v{D+i}, v{D+2*i}, v{D+2*i+1}" for i in range(8)]
        vo += [f"v_accvgpr_write_b32 a{8*pp+i}, v{D+i}" for i in range(8)]
        d_ = [dm.pop(0) if (dm and pp >= c.dma_from) else [None, None] for k in range(2 if pp >= 18 - c.dma_from else 1)] + [[None, None]]
        a([d_[0][0], mf[0], late[:1], fw.pop(0) if fw else None, d_[0][1], vo[:10], d_[1][0], mf[1], d_[1][1], vo[10:]])
        late = late[1:]
        if c.prefetch and pp == c.pfa: a(pf_w1(1))
        if c.prefetch and pp == c.pfa + 4: a(pf_w())
        if c.prefetch and pp == c.pfa + 7: a(pf_w1(2))
        if c.prefetch and pp == c.pfa + 10: a(pf_w1(3))
        if c.prefetch and pp == 17: a(pf_w1(4))
        if pp in (1, 6, 12): a(stamp(c, f"pp{pp}", True))
    assert not dm and not late, len(late)
    a(stamp(c, "norm", True))
    if c.spectral:
        a([WAITL("fd"), "s_barrier"])
        fdr = lambda ks: f"ds_read_b128 {ar(aFD[ks%8])}, v74 offset:{18432+1024*(ks%18)}"
        extra = [fdr(ks) for ks in range(7)] + [STG1]
        for ks in range(36):
            extra.append(p1a(ks, ar(aFD[ks % 8])))
            if ks + 7 < 36: extra.append(fdr(ks + 7))
        a(opt("p1c", heavy1(), [PR1, extra, p1b(sPR1, SP + 8192)]))
    return p

def p1a(ks, fr):
    A = vr(vLO if ks < 18 else vHI, 16)
    return f"{M32} {A}, {ar(4*ks)}, {fr}, {'0' if ks % 18 == 0 else A}"
vP, vQ = 144, 160
STG1 = f"""v_lshrrev_b32 v75, 5, v{vLANE}
s_lshl_b32 s{sT[5]}, s{sW}, 2
v_add_u32 v75, s{sT[5]}, v75
v_and_b32 v76, 15, v{vLANE}
v_xor_b32 v75, v75, v76
v_xor_b32 v76, 2, v75
v_lshlrev_b32 v75, 3, v75
v_lshlrev_b32 v76, 3, v76
v_and_b32 v72, 31, v{vLANE}
v_lshl_add_u32 v75, v72, 7, v75
v_lshl_add_u32 v76, v72, 7, v76"""
def p1b(pair, sp):
    o1 = [[f"s_cmp_lt_u32 s{pair}, 9", f"s_cselect_b32 s{sSGN}, 1.0, -1.0"]]
    o1 += [f"v_fma_f32 v{vLO+i}, v{vHI+i}, s{sSGN}, v{vLO+i}" for i in range(16)]
    o1 += [f"v_cvt_pk_bf16_f32 v{vLO+i}, v{vLO+2*i}, v{vLO+2*i+1}" for i in range(8)]
    o2 = []
    for st in range(2):
        for part in range(2):
            A = vr(vQ if part else vP, 16)
            o2.append(f"{M32} {A}, {vr(vLO+4*st)}, {vr(vE1+8*part+4*st)}, {'0' if st == 0 else A}")
    o3 = []
    for gq in range(4):
        x, y = vP + 4 * gq, vQ + 4 * gq
        o3 += [f"v_add_f32 v{x}, v{x}, v{y+1}", f"v_sub_f32 v{x+1}, v{x+1}, v{y}", f"v_add_f32 v{x+2}, v{x+2}, v{y+3}", f"v_sub_f32 v{x+3}, v{x+3}, v{y+2}"]
        o3 += [f"v_cvt_pk_bf16_f32 v{x}, v{x}, v{x+1}", f"v_cvt_pk_bf16_f32 v{x+1}, v{x+2}, v{x+3}"]
    o4 = [tagged(f"ds_write_b64 v{75+(gq&1)}, {vr(vP+4*gq, 2)} offset:{sp+4096*(gq>>1)}", "stg") for gq in range(4)]
    return [o1, o2, o3, o4]

NONCE = f"v_accvgpr_read_b32 v19, a215\ns_nop 0\nv_readfirstlane_b32 s{sNON}, v19\ns_nop 0\ns_mul_i32 s{sNON}, s{sNON}, 0x9e3779b1\ns_add_u32 s{sNON}, s{sNON}, 0x7f4a7c15"
def heavy1(): return f"s_lshr_b32 s{sT[6]}, 0x1100, s{sFJ}\ns_bitcmp1_b32 s{sT[6]}, 0"
def heavy3(): return f"s_lshr_b32 s{sT[6]}, 5, s{sQ}\ns_bitcmp1_b32 s{sT[6]}, 0"
def dbl(): return f"s_cmp_eq_u32 s{sDBL}, 1"
def light1(): return f"s_and_b32 s{sT[6]}, s{sFJ}, 11\ns_cmp_lg_u32 s{sT[6]}, 8"

def g1_bases():
    o = f"""v_bfe_u32 v15, v{vLANE}, 2, 2
v_lshrrev_b32 v16, 5, v{vLANE}
v_lshl_add_u32 v16, v16, 3, v15
v_bfe_u32 v17, v{vLANE}, 4, 1
v_and_b32 v18, 3, v{vLANE}
v_lshlrev_b32 v18, 3, v18
v_lshl_add_u32 v17, v17, 5, v18
v_lshl_add_u32 v{vG1H}, v16, 6, v17
v_add_u32 v{vG1H}, {WIN[0]}, v{vG1H}
v_lshl_add_u32 v16, v16, 7, v17
v_lshrrev_b32 v15, 1, v15
v_lshl_add_u32 v17, v15, 6, v16
v_xor_b32 v15, 1, v15
v_lshl_add_u32 v18, v15, 6, v16"""
    for n in range(2):
        for k in range(3): o += f"\nv_add_u32 v{vG1[n][k]}, {WIN[k]}, v{17+n}"
    return o

def g2_bases():
    t = [34, 35, 36, 37]
    o = f"""v_bfe_u32 v{t[0]}, v{vLANE}, 2, 2
v_bfe_u32 v{t[1]}, v{vLANE}, 4, 1
v_lshrrev_b32 v{t[2]}, 5, v{vLANE}
v_lshl_add_u32 v{t[2]}, v{t[2]}, 2, v{t[0]}
v_lshl_add_u32 v{t[2]}, v{t[1]}, 4, v{t[2]}
v_lshrrev_b32 v{t[0]}, 1, v{t[0]}
v_lshl_add_u32 v{t[0]}, v{t[1]}, 1, v{t[0]}
v_and_b32 v{t[3]}, 3, v{vLANE}
v_lshlrev_b32 v{t[3]}, 3, v{t[3]}
v_lshl_add_u32 v38, v{t[2]}, 6, v{t[3]}
v_lshl_add_u32 v39, v{t[2]}, 7, v{t[3]}"""
    for n in range(4):
        o += f"\nv_xor_b32 v{t[2]}, {n}, v{t[0]}\nv_lshl_add_u32 v{t[2]}, v{t[2]}, 5, v39"
        for k in range(3): o += f"\nv_add_u32 v{vG2[n][k]}, {WIN[k]}, v{t[2]}"
    for n in range(2):
        o += f"\nv_xor_b32 v{t[2]}, {n}, v{t[1]}\nv_lshl_add_u32 v{t[2]}, v{t[2]}, 5, v38"
        for k in range(2): o += f"\nv_add_u32 v{vG2H[n][k]}, {WIN[k]}, v{t[2]}"
    o += f"\nv_add_u32 v{vGDW2}, {WIN[2]}, v{vL16}\nv_add_u32 v{vGDW1}, {WIN[1]}, v{vL16}"
    return o

def stage_addr(nrd, rowshift, tmp, rows_per_wave):
    g, x = tmp + 1, tmp + 2
    o = f"""v_lshrrev_b32 v{g}, 4, v{vLANE}
s_mul_i32 s{sT[7]}, s{sW}, {rows_per_wave}
v_add_u32 v{g}, s{sT[7]}, v{g}
v_and_b32 v{x}, 15, v{vLANE}
v_lshlrev_b32 v{tmp}, {rowshift}, v{g}
v_lshl_add_u32 v{tmp}, v{x}, 3, v{tmp}
v_xor_b32 v{x}, v{x}, v{g}
v_and_b32 v{x}, 15, v{x}
v_lshlrev_b32 v{x}, 3, v{x}
v_lshl_add_u32 v{g}, v{g}, 7, v{x}"""
    for i in range(1, nrd): o += f"\nv_xor_b32 v{g+i}, {32*i}, v{g}"
    return o

def p2_block(rnd):
    o = []; Z = vZ[rnd]; WR, WI = vWR[rnd], vWI[rnd]; mo, me, ms, ad = vPT, vPT + 1, vPT + 2, vPT + 3
    zs = lambda k: vZS[k >> 2] + (k & 3)
    o.append(f"""v_and_b32 v{me}, 1, v{vLANE}
v_mul_u32_u24 v{mo}, 0x8000, v{me}
v_lshl_or_b32 v{mo}, v{mo}, 16, v{mo}
v_xor_b32 v{me}, 0x80008000, v{mo}
v_and_b32 v{ms}, 0x80000000, v{me}""")
    for k in range(8): o.append(f"v_xor_b32_dpp v{zs(k)}, v{Z+k}, v{mo} {DPPSW}")
    sh = []
    for k in range(16): sh += [f"v_lshlrev_b32 v{WR+k}, 16, v{WR+k}", f"v_lshl_add_u32 v{WI+k}, v{WI+k}, 16, v{ms}"]
    cs = lambda part, j, ks: ar(aCS + 4 * (8 * part + 2 * j + ks))
    for ks in range(2):
        for part in range(2):
            for j in range(4):
                src = vr(Z + 4 * ks) if part == 0 else vr(vZS[ks])
                o.append(f"{M16} {vr(vZA[j])}, {cs(part, j, ks)}, {src}, {'0' if ks + part == 0 else vr(vZA[j])}")
                o += sh[:2]; sh = sh[2:]
    o.append(f"""v_and_b32 v{ad+1}, 15, v{vLANE}
v_lshrrev_b32 v{ad}, 4, v{vLANE}
s_lshl_b32 s{sT[7]}, s{sW}, 2
v_add_u32 v{ad}, s{sT[7]}, v{ad}
v_xor_b32 v{ad}, v{ad}, v{ad+1}
v_lshlrev_b32 v{ad}, 3, v{ad}
v_lshl_add_u32 v{ad}, v{ad+1}, 7, v{ad}""")
    for j in range(4):
        for r in range(4): o.append(f"v_mul_f32 v{WR+4*j+r}, v{vZA[j]+r}, v{WR+4*j+r}")
        for r in range(4): o.append(f"v_fmac_f32_dpp v{WR+4*j+r}, v{vZA[j]+r}, v{WI+4*j+r} {DPPSW}")
    for k in range(8): o.append(f"v_cvt_pk_bf16_f32 v{Z+k}, v{WR+2*k}, v{WR+2*k+1}")
    for k in range(8): o.append(f"v_xor_b32_dpp v{zs(k)}, v{Z+k}, v{me} {DPPSW}")
    for ks in range(2):
        for part in range(2):
            for j in range(4):
                src = vr(Z + 4 * ks) if part == 0 else vr(vZS[ks])
                o.append(f"{M16} {vr(vZA[j])}, {src}, {cs(part, j, ks)}, {'0' if ks + part == 0 else vr(vZA[j])}")
    for j in range(4):
        o += [f"v_cvt_pk_bf16_f32 v{WR+2*j}, v{vZA[j]}, v{vZA[j]+1}", f"v_cvt_pk_bf16_f32 v{WR+2*j+1}, v{vZA[j]+2}, v{vZA[j]+3}"]
    for j in range(4):
        o.append(tagged(f"ds_write_b64 v{ad}, {vr(WR+2*j, 2)} offset:{SP+8192*rnd+2048*j}", "stg2"))
    return o

vY1 = 40
def p3a_block(kis):
    o = []; tmp = 64
    taus = [(ki, h) for ki in kis for h in range(2)]
    def mf(n):
        ki, h = taus[n]; P = tmp + 16 * (n % 3)
        return [f"{M16} {vr(P+8*t+4*part)}, {ar(aT2+4*(2*ki+h))}, {ar(aE3+8*part+4*t)}, 0" for t in range(2) for part in range(2)]
    def fin(n):
        ki, h = taus[n]; r = []
        for t in range(2):
            P = tmp + 16 * (n % 3) + 8 * t; Q = P + 4
            r += [f"v_sub_f32 v{P}, v{P}, v{Q+1}", f"v_add_f32 v{P+1}, v{P+1}, v{Q}", f"v_sub_f32 v{P+2}, v{P+2}, v{Q+3}", f"v_add_f32 v{P+3}, v{P+3}, v{Q+2}"]
        for t in range(2):
            P = tmp + 16 * (n % 3) + 8 * t; Y = vY1 + 8 * ki + 4 * t + 2 * h
            r += [f"v_cvt_pk_bf16_f32 v{Y}, v{P}, v{P+1}", f"v_cvt_pk_bf16_f32 v{Y+1}, v{P+2}, v{P+3}"]
        return r
    for n in range(len(taus) + 2):
        m = mf(n) if n < len(taus) else []
        f = fin(n - 2) if n >= 2 else []
        for k in range(4):
            if m: o.append(m[k])
            o += f[3 * k:3 * k + 3]
    return o

def main_stream(c):
    S = Stream(); bars = {}
    def rd2(regs, addr0, step):
        def mk(b):
            r = []
            for u in range(2):
                w, off = win(addr0 + step * u)
                r.append(f"ds_read_b64_tr_b16 a[{b+2*u}:{b+2*u+1}], v{regs[w]} offset:{off}")
            return r
        return mk
    S.mark("pf")
    for ks in range(36):
        f = S.add_frag((lambda ks: lambda b: [f"ds_read_b128 {ar(b)}, v74 offset:{1024*(ks%18)}"])(ks), None)
        S.add((lambda ks: lambda fr: p1a(ks, fr))(ks), f)
    bars["EB"] = len(S.g) - c.bar32
    for ps in range(9):
        S.mark(f"p{ps}")
        A = vr(ACC1(ps), 16)
        for ks in range(36):
            if ps < 8:
                beta, n = ps >> 1, ps & 1
                f = S.add_frag(rd2(vG1[n], SLOT[2 * (beta & 1) + ks // 18] + 2048 * (ks % 18), 512), "EB" if beta == 0 else f"E{beta-1}")
            else:
                f = S.add_frag(rd2([vG1H], SLOT[0] + 1024 * ks, 256), "E3")
            S.add((lambda A, ks: lambda fr: f"{M32} {A}, {fr}, {ar(4*ks)}, {'0' if ks == 0 else A}")(A, ks), f)
        if ps % 2 == 1 or ps == 8: bars[f"E{ps//2 if ps < 8 else 4}"] = len(S.g) - c.bar32
    def g2(name, slot, items, bar_in, bar_out):
        S.mark(name)
        for kind, off, tile, bop, first in items:
            n = tile % 4 if tile < 16 else tile - 16
            if kind == "F": mk = rd2(vG2[n], SLOT[slot] + off, 1024)
            elif kind == "H": mk = rd2(vG2H[n], SLOT[slot] + off, 512)
            else: mk = (lambda o: lambda b: [f"ds_read_b128 {ar(b)}, v{vGDW2} offset:{o}"])(SLOT[slot] + off - WIN[2])
            f = S.add_frag(mk, bar_in)
            for t in range(2):
                A = vr(ACC2(tile, t))
                S.add((lambda A, B, first: lambda fr: f"{M16} {A}, {fr}, {B}, {'0' if first else A}")(A, bop(t), first), f)
        if bar_out: bars[bar_out] = len(S.g) - 8
    own = lambda k: (lambda t: vr(Hreg(k) + 4 * t))
    par = lambda k: (lambda t: ar(aHP + 8 * k + 4 * t))
    for beta in range(4):
        g2(f"A{beta}", (1 + beta) % 4, [("F", 4096 * k, 4 * beta + n, own(k), k == 0) for k in range(7) for n in range(4)], f"E{4+beta}", f"E{5+beta}")
    g2("L", 1, [("F", 4096 * (2 * beta + k), 4 * beta + n, own(7 + k), False) for k in range(2) for beta in range(4) for n in range(4)], "E8", "E9")
    g2("HA", 2, [("H", 2048 * k, 16 + n, own(k), k == 0) for k in range(9) for n in range(2)], "E9", "E10")
    g2("GD", 3, [("G", 1024 * (18 * ki + tile), tile, (lambda ki: lambda t: vr(vY1 + 8 * ki + 4 * t))(ki), False) for ki in range(2) for tile in range(18)], "E10", "E11")
    for beta in range(4):
        g2(f"B{beta}", beta, [("F", 4096 * k, 4 * beta + n, par(k), False) for k in range(9) for n in range(4)], f"E{11+beta}", f"E{12+beta}")
    g2("HB", 0, [("H", 2048 * k, 16 + n, par(k), False) for k in range(9) for n in range(2)], "E15", None)
    S.mark("end")
    mk = S.marks; NG = len(S.g); G2 = mk["A0"]; O = mk["p0"]; B = bars

    vq = []
    blocks = {}; xrd = {}; after = {}; waits = {b: [] for b in bars}
    def block(g, body): blocks.setdefault(g, []).extend(flatten([body]))
    def push_vm(lo, hi, pre, ins):
        l = chain([pre, ins]); it = [lo, hi, l[:-1], l[-1]]
        vq.append(it); return l
    def spread(items, lo, hi):
        for i, (lds, text, tag) in enumerate(items):
            push_vm(lo + (i * (hi - lo)) // len(items), hi, f"s_add_u32 m0, s{sM0}, {lds}", tagged(text, tag))
    def w1blk(beta):
        return [(SLOT[2 * (beta & 1) + h] + 4096 * i - 128 * beta,
                 f"buffer_load_dwordx4 v{vDW1F}, {srd(SW1)}, s{sW1T+9*h+i} offen offset:{128*beta} lds", f"blk{beta}") for h in range(2) for i in range(9)]
    def w2full(slot, pieces, tag):
        return [(SLOT[slot] + 4096 * p - 128 * beta, f"buffer_load_dwordx4 v{vDW2F}, {srd(SW2)}, s{sW2T+k} offen offset:{128*beta} lds", tag) for p, (k, beta) in enumerate(pieces)]
    def spread_half(slot, treg, tag, lo, hi):
        for i in range(5):
            m0 = f"s_add_u32 m0, s{sM0}, {SLOT[slot]+4096*i}" if i < 4 else f"s_add_u32 m0, s{treg+5}, {SLOT[slot]}"
            push_vm(lo + (i * (hi - lo)) // 5, hi, m0, tagged(f"buffer_load_dwordx4 v{vDW2H}, {srd(SW2)}, s{treg+i} offen lds", tag))
    def half_table(treg, src):
        o = f"s_add_u32 s{sT[8]}, s{sM0}, 16384\ns_add_u32 s{sT[9]}, s{sM0}, 12288\ns_cmp_ge_u32 s{sW}, 2"
        for i in range(4): o += f"\ns_cselect_b32 s{treg+i}, s{src+2*i+1}, s{src+2*i}"
        o += f"\ns_cselect_b32 s{treg+4}, s{src+7}, s{src+8}\ns_cselect_b32 s{treg+5}, s{sT[9]}, s{sT[8]}"
        return o
    sHT = sW1T; sGD = sW1T + 14
    spread(w1blk(1), B["EB"] + 1, B["EB"] + 52); spread(w1blk(2), B["E0"] + 1, B["E0"] + 52); spread(w1blk(3), B["E1"] + 1, B["E1"] + 52)
    spread([(SLOT[0] + 4096 * i, f"buffer_load_dwordx4 v{vDW1H}, {srd(SW1)}, s{sHT+i} offen lds", "half") for i in range(9)], B["E2"] + 2, B["E2"] + 30)
    spread(w2full(1, [(k, 0) for k in range(7)], "A0"), B["E2"] + 40, B["E2"] + 66)
    spread(w2full(2, [(k, 1) for k in range(7)], "A1"), B["E3"] + 1, B["E3"] + 20)
    spread(w2full(3, [(k, 2) for k in range(7)], "A2"), B["E3"] + 20, G2 - 2)
    spread(w2full(0, [(k, 3) for k in range(7)], "A3"), G2 + 40, G2 + 110)
    spread(w2full(1, [(7 + k, beta) for beta in range(4) for k in range(2)], "L"), G2 + 112, G2 + 156)
    spread_half(2, sW1T + 0, "M", G2 + 158, G2 + 182)
    for i in range(9):
        push_vm(G2 + 184 + 4 * i, G2 + 236, f"s_add_u32 m0, s{sM0}, {SLOT[3]+4096*i}\ns_add_u32 s{sT[11]}, s{sGD}, {4096*i}",
                tagged(f"buffer_load_dwordx4 v{vL16}, {srd(SWS)}, s{sT[11]} offen sc1 lds", "GD"))
    spread(w2full(0, [(9 + k, 0) for k in range(9)], "B0"), B["E8"] + 10, B["E9"] + 6)
    spread(w2full(1, [(9 + k, 1) for k in range(9)], "B1"), B["E9"] + 8, B["E11"] - 4)
    spread(w2full(2, [(9 + k, 2) for k in range(9)], "B2"), B["E11"] + 2, B["E11"] + 44)
    spread(w2full(3, [(9 + k, 3) for k in range(9)], "B3"), B["E11"] + 46, B["E12"] + 30)
    spread_half(0, sW1T + 6, "HB", B["E12"] + 34, B["E13"] - 4)
    pub = {"EB": "blk0", "E0": "blk1", "E1": "blk2", "E2": "blk3", "E3": "half", "E4": "A0", "E5": "A1", "E6": "A2", "E7": "A3", "E8": "L", "E9": "M",
           "E10": "GD", "E11": "B0", "E12": "B1", "E13": "B2", "E14": "B3", "E15": "HB"}
    free = {"blk1": "EB", "blk2": "E0", "blk3": "E1", "half": "E2", "A0": "E2", "A1": "E3", "A2": "E3", "A3": "E4", "L": "E5", "M": "E6", "GD": "E7",
            "B0": "E8", "B1": "E9", "B2": "E11", "B3": "E11", "HB": "E12"}
    for b in bars: waits[b].append(WAITV(pub[b]))
    block(B["E2"], f"s_cmp_ge_u32 s{sW}, 2\n" + "\n".join(f"s_cselect_b32 s{sHT+i}, s{sW1T+2*i+1}, s{sW1T+2*i}" for i in range(9)))
    block(B["E4"], [half_table(sW1T + 0, sW2T), half_table(sW1T + 6, sW2T + 9),
                    f"s_mul_i32 s{sGD}, s{sFJ}, 55296\ns_add_u32 s{sGD}, s{sGD}, s{sM0}\ns_add_u32 s{sGD}, s{sGD}, {GD}"])
    fa = sT[7]

    lq0 = []; lq1 = []; lq2 = []
    def atoms(l):
        out = []; cur = []
        for i, x in enumerate(l):
            cur.append(x); live = False
            for r in (("s", "scc"), ("s", "vcc")):
                for y in l[i + 1:]:
                    if r in y.rd: live = True; break
                    if r in y.wr: break
            if not live: out.append(cur if len(cur) > 1 else cur[0]); cur = []
        return out
    def feed(q, lo, body, cb=None, front=False):
        at = atoms(chain(body)); it = [(lo, x, cb if n == len(at) - 1 else None) for n, x in enumerate(at)]
        if front: q[:0] = it
        else: q += it
    wl = flatten(w_loads(0, range(4)))
    def w_go(g):
        for k in range(16):
            lo = g + 1 + (k * c.wspan) // 16
            a_ = push_vm(lo, O + 140, wl[3 * k], wl[3 * k + 1]); b_ = push_vm(lo, O + 140, None, wl[3 * k + 2]); CHAINS.append(a_ + b_)
    feed(lq1, 0, w_addr(sTAU1, sXCD), w_go)
    feed(lq1, 0, g1_bases(), lambda g: need.append((g, B["EB"] - 1, "g1 bases")))
    feed(lq1, 0, STG1); feed(lq1, 0, stage_addr(2, 11, 176, 8)); feed(lq1, 0, NONCE)
    need = []

    def t1_pair(pair, n):
        base = 168 if n == 0 else 160
        rd = [f"ds_read_b64_tr_b16 {vr(base+4*ti+2*i, 2)}, v{177+i} offset:{SP+8192*n+4096*ti+512*i}" for ti in range(2) for i in range(2)]
        st = [f"s_lshl_b32 s{sT[1]}, s{pair}, 17\ns_lshl_b32 s{sT[2]}, s{sMI}, 7\ns_add_u32 s{sT[1]}, s{sT[1]}, s{sT[2]}\ns_add_u32 s{sT[1]}, s{sT[1]}, {T1}"]
        for ti in range(2):
            for i in range(2):
                st.append([f"s_add_u32 s{sT[2]}, s{sT[1]}, {65536*ti + 8192*i}",
                           tagged(f"buffer_store_dwordx2 {vr(base+4*ti+2*i, 2)}, v176, {srd(SWS)}, s{sT[2]} offen sc1", "t1st")])
        return rd, st
    o1, o2, o3, o4 = p1b(sPR0, SP)
    def p1b_3(g):
        r0, s0 = t1_pair(sPR0, 0); r1, s1 = t1_pair(sPR1, 1)
        block(g, o4); pre = chain(s0[0])
        block(g + 2, [pre, WAITL("stg"), "s_barrier"])
        for k in range(4): xrd.setdefault(g + 3 + k, []).append(I(r0[k]))
        for k in range(4): CHAINS.append(pre + push_vm(g + 7 + 2 * k, g + 17, s0[1 + k][0], s0[1 + k][1]))
        block(g + 18, opt("t1c", heavy1(), [PR1, r1, s1]))
        gp = g + 18 + c.x1lag
        fl = chain([f"s_lshl_b32 s{fa}, s{sFJ}, 5\ns_add_u32 s{fa}, s{fa}, s{sMI}\ns_lshl_b32 s{fa}, s{fa}, 2\ns_add_u32 s{fa}, s{fa}, {FL1}", flag_store(fa)])
        if abs(gp - B["E0"]) <= 8:
            gp = B["E0"]; waits["E0"] += [WAITV("t1st"), WAITV("tab")]; after.setdefault("E0", []).extend(fl)
        else: block(gp, [WAITV("t1st"), WAITV("tab"), "s_barrier", fl])
        info["x1"] = gp; need.append((g + 8, O + 70, "P regs"))
    def p1b_2(g):
        block(g + 1, o2); feed(lq0, g + 4, o3, p1b_3)
    info = {}
    feed(lq0, O + 3, o1, p1b_2)
    block(B["EB"] - 2, opt("w2", dbl(), [f"v_mov_b32 v72, v73", w_addr(sTAU2, sKAP2), w_loads(1, range(4)), "v_mov_b32 v73, v72"]))

    sC1, sC2 = sT[3], sT[4]
    feed(lq1, 0, f"""s_lshr_b32 s{sC1}, s{sTAU1}, 1
s_cmp_ge_u32 s{sTAU1}, 18
s_subb_u32 s{sC1}, s{sC1}, 0
{light1()}
s_cselect_b32 s{sC1}, s{sC1}, s{sFJ}
s_lshr_b32 s{sC2}, s{sTAU2}, 1
s_sub_u32 s{sC2}, s{sC2}, 1
s_cmp_eq_u32 s{sC2}, 16
s_cselect_b32 s{sC2}, 12, s{sC2}
{dbl()}
s_cselect_b32 s{sC2}, s{sC2}, s{sC1}
s_mul_i32 s{sC2}, s{sC2}, 0x1010000
s_lshl_b32 s{sT[13]}, s{sC1}, 8
s_or_b32 s{sC2}, s{sC2}, s{sT[13]}
s_or_b32 s{sC2}, s{sC2}, s{sFJ}
v_lshrrev_b32 v181, 4, v{vLANE}
v_lshlrev_b32 v181, 3, v181
v_bfe_u32 v181, s{sC2}, v181, 8
v_and_b32 v182, 15, v{vLANE}
v_lshlrev_b32 v182, 2, v182
v_lshl_add_u32 v181, v181, 7, v182
s_lshl_b32 s{sC1}, s{sC1}, 14
s_add_u32 s{sC1}, s{sC1}, s{sM0}
s_add_u32 s{sC1}, s{sC1}, {CS}""")
    if c.prefetch:
        pf2 = flatten([f"""s_and_b32 s{sT[8]}, s{sMI}, 7
s_lshl_b32 s{sT[8]}, s{sT[8]}, 1
s_add_u32 s{sT[8]}, s{sT[8]}, s{sR}
s_mul_i32 s{sT[8]}, s{sT[8]}, 41472
s_mul_i32 s{sT[13]}, s{sQ}, 663552
s_add_u32 s{sT[8]}, s{sT[8]}, s{sT[13]}
s_mul_i32 s{sT[13]}, s{sW}, 10368
s_add_u32 s{sT[8]}, s{sT[8]}, s{sT[13]}
v_min_u32 v77, 26, v{vLANE}
v_lshl_add_u32 v77, v77, 7, s{sT[8]}"""])
        def pf_go(g):
            for k, e in enumerate(("EB", "E0", "E1")):
                CHAINS.append(pf2 + push_vm(max(g + 1, B[e] + c.pf2at), B[e] + c.pf2at + 8, f"s_movk_i32 s{sT[11]}, {3456*k}",
                                            tagged(f"buffer_load_dword a{218+k}, v77, {srd(SW2)}, s{sT[11]} offen", "pf")))
        feed(lq1, 0, pf2, pf_go)
    feed(lq1, 0, g2_bases(), lambda g: need.append((g, O + 38, "setup uses the SiLU temporaries")))

    f1ld = f"buffer_load_dword v180, v181, {srd(SWS)}, s{fa} offen sc1"
    g1ck = O + c.f1at
    push_vm(g1ck - 26, g1ck - 16, f"s_movk_i32 s{fa}, {FL1}", tagged(f1ld, "f1"))
    def zloads(rnd, tau, kap):
        pre = f"s_lshl_b32 s{sT[5]}, s{tau}, 3\ns_add_u32 s{sT[5]}, s{sT[5]}, s{kap}\ns_lshl_b32 s{sT[5]}, s{sT[5]}, 2\ns_add_u32 s{sT[5]}, s{sT[5]}, s{sW}\ns_lshl_b32 s{sT[5]}, s{sT[5]}, 11\ns_add_u32 s{sT[5]}, s{sT[5]}, {T1}"
        return flatten([pre]), [tagged(f"buffer_load_dwordx2 {vr(vZ[rnd]+2*k, 2)}, v{vL8}, {srd(SWS)}, s{sT[5]} offen offset:{512*k} sc1", f"z{rnd}") for k in range(4)]
    pre1, z1 = zloads(1, sTAU2, sKAP2); pre0, z0 = zloads(0, sTAU1, sXCD)
    block(g1ck, [f"s_movk_i32 s{fa}, {FL1}", spin("f1", f1ld, 180), opt("z2", dbl(), [pre1, z1]), pre0])
    for k in range(4):
        push_vm(g1ck + 1 + 2 * k, B["E2"] - 20, f"s_add_u32 m0, s{sM0}, {SP+4096*k}\ns_add_u32 s{sT[11]}, s{sC1}, {4096*k}",
                tagged(f"buffer_load_dwordx4 v{vL16}, {srd(SWS)}, s{sT[11]} offen sc1 lds", "cs"))
        CHAINS.append(pre0 + push_vm(g1ck + 9 + 2 * k, B["E2"], None, z0[k]))
    waits["E2"].append(WAITV("cs"))
    for k in range(16): xrd.setdefault(B["E2"] + 5 + k, []).append(I(f"ds_read_b128 {ar(aCS+4*k)}, v{vL16} offset:{SP+1024*k}"))
    block(B["E2"] + 24, [WAITR([ar(aCS + 60)]), "s_barrier"])
    gP2 = B["E2"] + 26
    def t2_round(rnd, tau, kap):
        rd = [f"ds_read_b64_tr_b16 {vr(168+8*rnd+2*i, 2)}, v{161+i} offset:{SP+8192*rnd+512*i}" for i in range(4)]
        st = [flatten([f"s_lshl_b32 s{sT[1]}, s{tau}, 16\ns_lshl_b32 s{sT[2]}, s{kap}, 7\ns_add_u32 s{sT[1]}, s{sT[1]}, s{sT[2]}\ns_add_u32 s{sT[1]}, s{sT[1]}, {T2}"])]
        for i in range(4):
            st.append([f"s_add_u32 s{sT[2]}, s{sT[1]}, {4096*i}",
                       tagged(f"buffer_store_dwordx2 {vr(168+8*rnd+2*i, 2)}, v160, {srd(SWS)}, s{sT[2]} offen sc1", "t2st")])
        return rd, st
    ra, sa = t2_round(0, sTAU1, sXCD); rb_, sb = t2_round(1, sTAU2, sKAP2)
    sa[0] += flatten([light1(), f"s_cselect_b32 s{sT[1]}, s{sT[1]}, {OOB}"])
    block(gP2, [opt("p2a", light1(), p2_block(0)), opt("p2b", dbl(), p2_block(1)), stage_addr(4, 10, 160, 16), sa[0], WAITL("stg2"), "s_barrier", ra])
    for k in range(4): CHAINS.append(sa[0] + push_vm(gP2 + 3 + 2 * k, gP2 + 11, sa[1 + k][0], sa[1 + k][1]))
    block(gP2 + 12, opt("t2b", dbl(), [rb_, sb]))
    fl2 = lambda tau, kap: [f"s_lshl_b32 s{fa}, s{tau}, 3\ns_add_u32 s{fa}, s{fa}, s{kap}\ns_lshl_b32 s{fa}, s{fa}, 2\ns_add_u32 s{fa}, s{fa}, {FL2}", flag_store(fa)]
    waits[c.f2pub].append(WAITV("t2st"))
    after.setdefault(c.f2pub, []).extend([opt("f2a", light1(), fl2(sTAU1, sXCD)), opt("f2b", dbl(), fl2(sTAU2, sKAP2))])

    if not c.e3early: feed(lq1, G2 + c.e3at, e3_table(112, 10, 11, 12, 13, 14), lambda g: need.append((g, mk["HA"] - 2, "inverse table")))
    f2ld = f"buffer_load_dword v9, v8, {srd(SWS)}, s{sT[9]} offen sc1"
    f2s = f"s_lshl_b32 s{sT[9]}, s{sKS0}, 6\ns_add_u32 s{sT[9]}, s{sT[9]}, {FL2}"
    g2ck = G2 + c.f2at
    f2a = flatten([f"{heavy3()}\ns_cselect_b32 s{sT[9]}, 47, 31\nv_min_u32 v8, s{sT[9]}, v{vLANE}\nv_lshlrev_b32 v8, 2, v8"])
    block(g2ck - 46, f2a); CHAINS.append(f2a + push_vm(g2ck - 42, g2ck - 28, f2s, tagged(f2ld, "f2")))
    def t2loads(ks):
        r = []
        for k in ks:
            r.append((f"s_add_u32 s{sT[0]}, s{sT[5]}, {65536*k}", tagged(f"buffer_load_dwordx2 {ar(aT2+4*k, 2)}, v{vL8}, {srd(SWS)}, s{sT[0]} offen sc1", "t2ld")))
            r.append((None, tagged(f"buffer_load_dwordx2 {ar(aT2+4*k+2, 2)}, v{vL8}, {srd(SWS)}, s{sT[0]} offen offset:512 sc1", "t2ld")))
        return r
    gd3 = []
    for i in range(5):
        gd3.append(f"s_add_u32 m0, s{sM0}, {SLOT[2]+18432+4096*i}\ns_add_u32 s{sT[0]}, s{sGD}, {36864+4096*i}" if i < 4 else
                   f"s_add_u32 m0, s{sW1T+5}, {SLOT[2]+18432}\ns_sub_u32 s{sT[0]}, s{sW1T+5}, s{sM0}\ns_add_u32 s{sT[0]}, s{sT[0]}, s{sGD}\ns_add_u32 s{sT[0]}, s{sT[0]}, 36864")
        gd3.append(tagged(f"buffer_load_dwordx4 v{vL16}, {srd(SWS)}, s{sT[0]} offen sc1 lds", "M"))
    block(B["E7"] + 1, opt("gd3d", heavy3(), gd3))
    t2b = flatten([f"s_lshl_b32 s{sT[5]}, s{sKS0}, 7\ns_add_u32 s{sT[5]}, s{sT[5]}, s{sB}\ns_lshl_b32 s{sT[5]}, s{sT[5]}, 10\ns_add_u32 s{sT[5]}, s{sT[5]}, {T2}"])
    block(g2ck, [f2s, spin("f2", f2ld, 9), t2b, opt("t2c", heavy3(), [[x for pr in t2loads([4, 5]) for x in pr if x]])])
    ch_ = list(t2b)
    for n, (pre, ld) in enumerate(t2loads(range(4))): ch_ += push_vm(g2ck + 1 + 2 * n, g2ck + 30, pre, ld)
    CHAINS.append(ch_)
    gFH = B["E10"] + 1
    push_vm(gFH - 40, gFH - 26, f"s_xor_b32 s{sT[11]}, s{sFH}, 4", tagged(f"buffer_load_dword v33, off, {srd(SWS)}, s{sT[11]} sc1", "fh"))
    block(gFH, [f"s_xor_b32 s{sT[9]}, s{sFH}, 4", spin("fh", f"buffer_load_dword v33, off, {srd(SWS)}, s{sT[9]} sc1", 33)])
    ch_ = []
    for k in range(18):
        ch_ += push_vm(gFH + 1 + c.hstep * k, mk["B0"] + 4 * k - c.hmargin, f"s_add_u32 s{sT[10]}, s{sHLD}, {1024*k}" if k % 4 == 0 else None,
                       tagged(f"buffer_load_dwordx4 {ar(aHP+4*k)}, v{vL16}, {srd(SWS)}, s{sT[10]} offen offset:{1024*(k%4)} sc1", "hld"))
    CHAINS.append(ch_)
    fr = [96 + 4 * k for k in range(8)]
    rd3 = lambda k: f"ds_read_b128 {ar(fr[k%8])}, v{vGDW1} offset:{SLOT[2]+18432+1024*k-WIN[1]}"
    g3 = [rd3(k) for k in range(7)] + p3a_block([2])
    for k in range(18):
        for t in range(2):
            g3.append(f"{M16} {vr(ACC2(k, t))}, {ar(fr[k%8])}, {vr(vY1+16+4*t)}, {vr(ACC2(k, t))}")
            if t == 0 and k + 7 < 18: g3.append(rd3(k + 7))
    block(mk["GD"] - 1, [p3a_block([0, 1]), opt("gd3", heavy3(), g3)])
    nld = f"buffer_load_dwordx4 v[10:13], v14, {srd(SWS)}, s{sT[9]} offen sc1"
    wg0 = f"s_cmp_eq_u32 s{sWG}, 0"
    block(mk["B1"] + 2, opt("n1", wg0, [f"v_lshrrev_b32 v14, 2, v{vLANE}\nv_and_b32 v13, 3, v{vLANE}\nv_lshlrev_b32 v13, 4, v13\nv_lshl_add_u32 v14, v14, 7, v13\ns_movk_i32 s{sT[9]}, {FL1}", tagged(nld, "nl")]))
    block(mk["B2"] + 2, opt("n2", wg0, [f"s_movk_i32 s{sT[9]}, {FL1}", spin("n", nld, 10, 4), f"s_mov_b32 s{fa}, 0", flag_store(fa)]))
    for nm in c.stamp_at: block(int(nm[1:]) if nm[0] == "g" else (bars[nm] if nm in bars else mk[nm]) + 2, stamp(c, nm))

    if c.prof:
        lo, hi, step = map(int, c.prof.split(","))
        vst = lambda g: 183 if g < B["E4"] + 1 else 4
        block(B["E4"], RAW("v_mov_b32 v4, v183"))
        for k, g in enumerate(range(lo, min(hi, NG - 6), step)):
            block(g, RAW("s_memtime s[0:1]")); block(g + 4, RAW(f"v_writelane_b32 v{vst(g+4)}, s0, {k}")); c.names.append(f"g{g}")
    post = []
    for beta in range(5):
        endg = mk[f"B{beta+1}"] if beta < 3 else (mk["HB"] if beta == 3 else NG)
        for pi in ([2 * beta, 2 * beta + 1] if beta < 4 else [8]):
            for t in range(2):
                n = 2 * pi + t; tmp = 64 + 4 * (n % 12)
                cv = [f"v_cvt_pk_bf16_f32 v{tmp+2*h+k}, v{ACC2(2*pi+h, t)+2*k}, v{ACC2(2*pi+h, t)+2*k+1}" for h in range(2) for k in range(2)]
                st = [f"s_add_u32 s{sT[11]}, s{sPST}, {8192*n}", tagged(f"buffer_store_dwordx4 {vr(tmp)}, v{vL16}, {srd(SWS)}, s{sT[11]} offen {c.pflav}", "pA" if n < 8 else "pB")]
                if endg >= NG: post += cv + st
                else: feed(lq1, endg + 3 + (n % 4) * (12 if beta < 3 else 0), cv, (lambda st: lambda g: push_vm(g + 1, g + 10, st[0], st[1]))(st))

    if c.inred:
        SO = SWR; sRP, sRO, sRQ, sRF = sW2T, sW2T + 1, sW2T + 2, sW2T + 3; u0, u1 = sT[8], sT[13]
        rs = chain([mk_srd(SO, 2, 2359296), f"""s_lshl_b32 s{sRF}, s{sMI}, 1
s_add_u32 s{sRF}, s{sRF}, s{sR}
s_lshr_b32 s{u0}, s{sQ}, 1
s_lshl_b32 s{sRP}, s{sRF}, 2
s_add_u32 s{sRP}, s{sRP}, s{u0}
s_mul_i32 s{sRP}, s{sRP}, {18*8192}
s_add_u32 s{sRP}, s{sRP}, {PB}
s_lshl_b32 s{sRO}, s{sMI}, 2
s_add_u32 s{sRO}, s{sRO}, s{u0}
s_mul_i32 s{sRO}, s{sRO}, 1152
s_and_b32 s{u0}, s{sQ}, 1
s_mul_i32 s{sRQ}, s{u0}, {1024*1152}
s_add_u32 s{sRQ}, s{sRQ}, s{sRO}
s_lshl_b32 s{u1}, s{sR}, 6
s_add_u32 s{sRQ}, s{sRQ}, s{u1}
s_lshl_b32 s{u1}, s{sW}, 3
s_add_u32 s{sRQ}, s{sRQ}, s{u1}
s_add_u32 s{sRQ}, s{sRQ}, 512
s_lshl_b32 s{u1}, s{u0}, 7
s_add_u32 s{sRO}, s{sRO}, s{u1}
s_mul_i32 s{u1}, s{sR}, 640
s_add_u32 s{sRO}, s{sRO}, s{u1}
s_lshr_b32 s{u1}, s{sW}, 1
s_lshl_b32 s{u1}, s{u1}, 6
s_add_u32 s{sRO}, s{sRO}, s{u1}
s_and_b32 s{u1}, s{sW}, 1
s_mul_i32 s{u1}, s{u1}, {1024*1152}
s_add_u32 s{sRO}, s{sRO}, s{u1}
s_lshl_b32 s{u1}, s{u0}, 13
s_add_u32 s{sRP+4}, s{sRP}, s{u1}
s_lshl_b32 s{u1}, s{sW}, 8
s_add_u32 s{sRP+4}, s{sRP+4}, s{u1}
s_add_u32 s{sRP+4}, s{sRP+4}, {16*8192}
s_lshl_b32 s{u0}, s{u0}, 2
s_add_u32 s{u0}, s{u0}, s{sW}
s_lshl_b32 s{u0}, s{u0}, 13
s_add_u32 s{sRP}, s{sRP}, s{u0}
s_lshl_b32 s{sRF}, s{sRF}, 8
s_add_u32 s{sRF}, s{sRF}, {FLP}
v_and_b32 v49, 15, v{vLANE}
v_mul_u32_u24 v49, 73728, v49
v_lshrrev_b32 v50, 4, v{vLANE}
v_lshl_add_u32 v49, v50, 4, v49
v_lshrrev_b32 v50, 2, v{vLANE}
v_mul_u32_u24 v50, 73728, v50
v_bfe_u32 v51, v{vLANE}, 1, 1
v_lshl_add_u32 v50, v51, 5, v50
v_and_b32 v51, 1, v{vLANE}
v_lshl_add_u32 v50, v51, 2, v50
v_and_b32 v51, 7, v{vLANE}
v_lshlrev_b32 v51, 2, v51
v_lshlrev_b32 v33, 2, v{vLANE}"""])
        def x_go(g):
            need.append((g, mk["B3"] + 20, "reduction setup"))
            for k, t in enumerate((f"buffer_load_dwordx4 v[40:43], v49, {srd(SX)}, s{sRO} offen", f"buffer_load_dwordx4 v[44:47], v49, {srd(SX)}, s{sRO} offen offset:256",
                                   f"buffer_load_dword v48, v50, {srd(SX)}, s{sRQ} offen")):
                push_vm(g + 2 + 6 * k, g + 40, None, tagged(t, "xr"))
        feed(lq2, mk["B0"] + 4, rs, x_go)
        flp = lambda st: [f"s_lshl_b32 s{fa}, s{sQ}, 2\ns_add_u32 s{fa}, s{fa}, s{sRF}" + (f"\ns_add_u32 s{fa}, s{fa}, 128" if st else ""), flag_store(fa)]
        waits["E15"].append(WAITV("pA")); after.setdefault("E15", []).extend(flp(0))
        fld = lambda st: f"buffer_load_dword v{60+st}, v51, {srd(SWS)}, s{sRF} offen offset:{128*st} sc1"
        def piece_loads(base, sreg, off):
            o = [f"s_add_u32 s{sT[0]}, s{sreg}, {off}\ns_add_u32 s{sT[1]}, s{sreg}, {off+4096}"]
            return o + [f"buffer_load_dwordx4 {vr(base+4*q)}, v{vL16}, {srd(SWS)}, s{sT[q>>2]} offen offset:{1024*(q&3)} sc1" for q in range(8)]
        sLO, sHI, sMK, sLN = sT[2], sT[3], sT[4], sT[5]
        def piece_sum(base, x, off):
            o = []
            for k in range(4): o.append(f"v_lshlrev_b32 v{52+2*k}, 16, v{base+k}\nv_and_b32 v{53+2*k}, s{sMK}, v{base+k}")
            for q in range(1, 8):
                for k in range(4): o.append(f"v_dot2c_f32_bf16 v{52+2*k}, s{sLO}, v{base+4*q+k}\nv_dot2c_f32_bf16 v{53+2*k}, s{sHI}, v{base+4*q+k}")
            for k in range(4): o.append(f"v_lshlrev_b32 v{base+2*k}, 16, v{x+k}\nv_and_b32 v{base+1+2*k}, s{sMK}, v{x+k}")
            for k in range(4): o.append(f"v_permlane32_swap_b32 v{52+k}, v{56+k}")
            for k in range(4): o.append(f"v_permlane16_swap_b32 v{52+k}, v{56+k}")
            for k in range(8): o.append(f"v_fma_f32 v{52+k}, v{52+k}, s{sLN}, v{base+k}")
            for k in range(4): o.append(f"v_cvt_pk_bf16_f32 v{x+k}, v{52+2*k}, v{53+2*k}")
            o.append(f"buffer_store_dwordx4 {vr(x)}, v49, {srd(SO)}, s{sRO} offen offset:{off}")
            return o
        qsum = [f"v_lshlrev_b32 v62, 16, v160\nv_and_b32 v63, s{sMK}, v160"]
        for q in range(1, 8): qsum.append(f"v_dot2c_f32_bf16 v62, s{sLO}, v{160+q}\nv_dot2c_f32_bf16 v63, s{sHI}, v{160+q}")
        qsum.append(f"v_lshlrev_b32 v160, 16, v48\nv_and_b32 v161, s{sMK}, v48\ns_nop 0\nv_fma_f32 v62, v62, s{sLN}, v160\nv_fma_f32 v63, v63, s{sLN}, v161\nv_cvt_pk_bf16_f32 v48, v62, v63")
        qsum.append(f"buffer_store_dword v48, v50, {srd(SO)}, s{sRQ} offen")
        post += [tagged(fld(0), "fp0"),
                 f"s_movk_i32 s{sLO}, 0x3f80\ns_mov_b32 s{sHI}, 0x3f800000\ns_mov_b32 s{sMK}, 0xffff0000\ns_mov_b32 s{sLN}, {fhex(-1/LOG2E)}",
                 stamp(c, "last"), WAITV("pB"), "s_barrier", flp(1), stamp(c, "pub"), spin("fp0", fld(0), 60), piece_loads(192, sRP, 0), tagged(fld(1), "fp1"),
                 piece_sum(192, 40, 0), stamp(c, "r1"), spin("fp1", fld(1), 61, sleep=False), stamp(c, "f1"), piece_loads(224, sRP, 8 * 8192),
                 f"s_add_u32 s{sT[0]}, s{sRP+4}, 4096"]
        post += [f"buffer_load_dword v{160+q}, v33, {srd(SWS)}, s{sRP+4 if q < 4 else sT[0]} offen offset:{1024*(q&3)} sc1" for q in range(8)]
        post += [piece_sum(224, 44, 256), qsum]

    NP = 72; hdone = {}
    E = lambda P, s: vE[2 * (P % 3) + s]
    T = lambda P, s: ACC1(P // 8) + 2 * (P % 8) + s
    sq = []; st_ = dict(n=0, p1=None, p2=None)
    def h_out(k):
        def cb(g):
            hdone[k] = g
            for t in range(2):
                push_vm(g + 2 + 2 * t, g + 16, f"s_add_u32 s{sT[11]}, s{sHST}, {1024*(2*k+t)}",
                        tagged(f"buffer_store_dwordx4 {vr(Hreg(k)+4*t)}, v{vL16}, {srd(SWS)}, s{sT[11]} offen sc1", "hst"))
        return cb
    def pack(P):
        def cb(g):
            lq0.append((g + 1, I(f"v_cvt_pk_bf16_f32 v{Hreg(P//8)+P%8}, v{T(P, 0)}, v{T(P, 1)}"), None))
            if P % 8 == 7: lq0.extend((g + 2, I(f"v_permlane16_swap_b32 v{Hreg(P//8)+i}, v{Hreg(P//8)+4+i}"), h_out(P // 8) if i == 3 else None) for i in range(4))
        return cb
    def refill(g):
        if sq: return
        Pn, P1, P2 = st_["n"], st_["p1"], st_["p2"]
        ready = Pn < NP and g >= O + 36 * (Pn // 8 + 1) + 3
        if not ready and P1 is None and P2 is None: return
        add = lambda t, cb=None: sq.append((I(t), cb))
        if ready: add(f"v_exp_f32 v{E(Pn, 0)}, v{T(Pn, 0)}")
        if P1 is not None:
            for s in range(2): add(f"v_add_f32 v{E(P1, s)}, 1.0, v{E(P1, s)}")
        if ready: add(f"v_exp_f32 v{E(Pn, 1)}, v{T(Pn, 1)}")
        if P2 is not None:
            for s in range(2): add(f"v_mul_f32 v{T(P2, s)}, v{T(P2, s)}, v{E(P2, s)}", pack(P2) if s else None)
        if P1 is not None:
            for s in range(2): add(f"v_rcp_f32 v{E(P1, s)}, v{E(P1, s)}")
        st_.update(n=Pn + ready, p1=Pn if ready else None, p2=P1)
    un = lambda x: len(x) if isinstance(x, list) else (2 if x.kind == "T" else 1)
    isT = lambda x: not isinstance(x, list) and x.kind == "T"
    def ready(q, g): return [x for x in q[:4] if x[0] <= g] if q and q[0][0] <= g else []
    def take(g, cap, nmax, light_first=False):
        r = []; plain = False
        while len(r) < nmax and cap > 0:
            refill(g); src = None
            order = ([lq0, sq, lq1, lq2] if light_first else [sq, lq0, lq1, lq2])
            for q in order:
                if not q or (q is not sq and q[0][0] > g): continue
                x = q[0][0] if q is sq else q[0][1]
                if (isT(x) and plain) or (un(x) > cap and (r or q is sq)): continue
                src = q; break
            if src is None: break
            it = src.pop(0); x, cb = (it if src is sq else it[1:])
            r.append(x); cap -= un(x); plain = plain or not isT(x)
            if cb: cb(g)
        return r

    S.build(aRING, bars, lead32=c.lead32)
    nrd = [len(g.rd) for g in S.g]
    barg = set(bars.values())
    val = {}; vmat = {}; preat = {}; clear = set(); busy = set(); cnt = 0; lastvm = -9
    for g in range(NG):
        refill(g)
        dues = [z for z in vq if z[0] <= g]
        if dues:
            z = min(dues, key=lambda z: z[1]); vq.remove(z); vq.insert(0, z)
        due = bool(dues) and g not in barg
        if g < G2:
            cut = max(-1, nrd[g] + len(xrd.get(g, [])) - 2)
            nl = len(ready(lq0, g))
            urgent = due and vq[0][1] - g < 2 * sum(1 for z in vq if z[1] <= vq[0][1])
            Pn = st_["n"]
            behind = Pn < NP and g > O + 36 * (Pn // 8 + 1) + 3 + (9 * (Pn % 8)) // 2 + c.lagok
            if due and (g - lastvm >= 2 or urgent or (g < O + 38 and vq[0][3].tag == "w0")):
                it = vq.pop(0); vmat[g] = it; preat[g] = it[2]; lastvm = g
                store = it[3].kind == "VS" and "x4" in it[3].op
                if behind: val[g] = take(g, 2 if store else 4, 3, nl >= 3)
                else: val[g] = [] if store else take(g, 2 - cut, 2 - min(cut, 0), nl >= 2)
            else:
                if g % 3 and g not in barg and ready(lq1, g) and not isinstance(lq1[0][1], list) and lq1[0][1].kind == "S" and lq1[0][2] is None:
                    preat[g] = [lq1.pop(0)[1]]
                val[g] = take(g, 4 - cut, 3 - min(cut, 0), nl >= 3)
            continue
        if g in busy: continue
        work = bool(sq) or bool(ready(lq0, g))
        if due and (not work or vq[0][1] - g < 3 * sum(1 for z in vq if z[1] <= vq[0][1]) + 1):
            it = vq[0]; x = g + (2 if it[2] else 1)
            if x < NG and not (barg & set(range(g, x + 1))):
                vq.pop(0); vmat[x] = it; clear.add(x); busy.update(range(g, x + 1))
                if it[2]: preat[x if (g in blocks or g + 1 in blocks) else g] = it[2]
                continue
        cnt += 1
        if cnt % 7 == 0 or g in barg or g - 1 in barg: continue
        if work: val[g] = take(g, 2, 2, len(ready(lq0, g)) >= 2)
        elif ready(lq1, g) and isT(lq1[0][1]):
            if g + 1 not in barg and g + 1 < NG:
                val[g + 1] = take(g + 1, 2, 1); clear.add(g + 1); busy.add(g + 1)
        else: val[g] = take(g, 1, 1)
    assert not sq and st_["n"] == NP and st_["p1"] is None and st_["p2"] is None and not lq0 and not lq2
    rest = []
    while lq1:
        _, x, cb = lq1.pop(0); rest += flatten([x])
        if cb: cb(NG)
    post = [[it[2], it[3]] for it in vq if it[0] < NG] + rest + [[it[2], it[3]] for it in vq if it[0] >= NG] + post
    for g, lim, what in need: assert g <= lim, (what, g, lim)
    assert hdone[6] < mk["A0"] + 46 and hdone[7] < mk["L"] - 2 and hdone[8] < mk["L"] + 30, hdone
    for k in range(6): assert hdone[k] < O + 36 * (k + 3), hdone
    hlast = max(g for g, it in vmat.items() if it[3].tag == "hst")
    eH = min((b for b in bars if bars[b] > hlast + c.hlag), key=lambda b: bars[b])
    waits[eH].append(WAITV("hst"))
    after.setdefault(eH, []).extend([f"s_mov_b32 s{fa}, s{sFH}", flag_store(fa)])

    S.build(aRING, bars, lead32=c.lead32, clear=clear)
    for b, gi in bars.items():
        lastf = max(k for k, f in enumerate(S.frags) if f["at"] < gi)
        S.g[gi].pre += flatten([WAITR([S.frags[lastf]["regs"]]), waits[b], "s_barrier"])
        if b in after: S.g[gi].blocks = flatten([after[b]]) + S.g[gi].blocks
    for gi, it in vmat.items(): S.g[gi].vm.append(it[3])
    for gi, x in xrd.items(): S.g[gi].rd += x
    for gi, pre in preat.items(): S.g[gi].pre += pre
    for gi, l in val.items(): S.g[gi].val += flatten(l)
    for gi, l in blocks.items(): S.g[gi].blocks += l
    S.place_waits()
    inv = {v: k for k, v in pub.items()}
    for g, it in vmat.items():
        tg = it[3].tag
        if tg in inv: assert g < bars[inv[tg]], (tg, g)
        if tg in free: assert g > bars[free[tg]], (tg, g)
        if tg == "w0": assert g < B["E1"], g
    order = sorted(bars.values())
    for f in S.frags:
        nb = [x for x in order if f["after"] is None or x > bars[f["after"]]]
        if nb: assert f["at"] < nb[0], f
    late = {it[3].tag: (g, it[1]) for g, it in sorted(vmat.items()) if g > it[1]}
    assert not ({"t1st", "t2st", "f1", "f2", "fh", "cs"} & set(late)), late
    info.update(marks=mk, bars=bars, eH=eH, hdone=hdone, late=late, S=S)
    return S.emit() + flatten(post), info

def main_kernel(c):
    p = [prologue(c), layernorm(c), stamp(c, "B0")]
    body, info = main_stream(c)
    if c.pro: body = []
    p += [body, stamp(c, "done"), "s_waitcnt vmcnt(0)", stamp(c, "drained"), stamp_out(c), LABEL("L_exit"), "s_endpgm"]
    log = []
    prog = pad_hazards(resolve_waits(flatten(p), log), log)
    if not c.pro and not c.nover: verify_chains(prog)
    return prog, log, info

def reduce_kernel(c):
    p = []; a = p.append
    a("s_cmp_ge_u32 s2, 576\ns_cbranch_scc1 L_rexit")
    a("s_load_dwordx2 s[20:21], s[0:1], 0\ns_load_dwordx2 s[22:23], s[0:1], 48\ns_load_dwordx2 s[24:25], s[0:1], 64")
    a("v_lshrrev_b32 v8, 6, v0\nv_and_b32 v1, 63, v0\nv_readfirstlane_b32 s26, v8\nv_lshlrev_b32 v2, 4, v1")
    a("s_lshl_b32 s27, s2, 2\ns_add_u32 s27, s27, s26")
    a(f"s_mul_i32 s28, s27, 3641\ns_lshr_b32 s28, s28, 16\ns_mul_i32 s29, s28, 18\ns_sub_u32 s29, s27, s29")
    a("s_and_b32 s30, s28, 3\ns_bfe_u32 s31, s28, 0x10002\ns_lshr_b32 s32, s28, 3")
    a("s_and_b32 s33, s29, 1\ns_lshr_b32 s34, s29, 1")
    a("s_lshl_b32 s35, s34, 5\ns_mul_i32 s36, s31, 320\ns_add_u32 s36, s36, s35\ns_lshl_b32 s37, s31, 5\ns_add_u32 s37, s37, s35\ns_cmp_lt_u32 s34, 8\ns_cselect_b32 s36, s36, s37")
    a("s_lshl_b32 s37, s33, 10\ns_lshl_b32 s38, s32, 2\ns_add_u32 s37, s37, s38\ns_add_u32 s37, s37, s30\ns_mul_i32 s37, s37, 1152\ns_lshl_b32 s36, s36, 1\ns_add_u32 s36, s36, s37")
    a("v_and_b32 v3, 15, v1\nv_mul_u32_u24 v3, 73728, v3\nv_lshrrev_b32 v4, 4, v1\nv_lshl_add_u32 v3, v4, 4, v3")
    a(f"s_lshl_b32 s27, s27, 13\ns_add_u32 s27, s27, {PB}\ns_add_u32 s39, s27, 4096")
    a("s_waitcnt lgkmcnt(0)")
    a(mk_srd(4, 20, 2359296)); a(mk_srd(8, 22, 2359296)); a(mk_srd(12, 24, WS_END))
    for q in range(8):
        a(f"buffer_load_dwordx4 {vr(16+4*q)}, v2, s[12:15], s{27 if q < 4 else 39} offen offset:{1024*(q%4)}")
    a("buffer_load_dwordx4 v[8:11], v3, s[4:7], s36 offen")
    a("s_mov_b32 s40, 0x00003f80\ns_mov_b32 s41, 0x3f800000\ns_mov_b32 s42, 0xffff0000")
    for k in range(4): a(f"v_lshlrev_b32 v{48+2*k}, 16, v{16+k}\nv_and_b32 v{49+2*k}, s42, v{16+k}")
    for q in range(1, 8):
        for k in range(4): a(f"v_dot2c_f32_bf16 v{48+2*k}, s40, v{16+4*q+k}\nv_dot2c_f32_bf16 v{49+2*k}, s41, v{16+4*q+k}")
    for k in range(4): a(f"v_permlane32_swap_b32 v{48+k}, v{52+k}")
    for k in range(4): a(f"v_permlane16_swap_b32 v{48+k}, v{52+k}")
    a(f"s_mov_b32 s43, {fhex(-1/LOG2E)}")
    for k in range(4):
        a(f"v_lshlrev_b32 v12, 16, v{8+k}\nv_and_b32 v13, s42, v{8+k}\nv_fma_f32 v12, v{48+2*k}, s43, v12\nv_fma_f32 v13, v{49+2*k}, s43, v13\nv_cvt_pk_bf16_f32 v{56+k}, v12, v13")
    a("buffer_store_dwordx4 v[56:59], v3, s[8:11], s36 offen")
    a(["s_waitcnt vmcnt(0)", LABEL("L_rexit"), "s_endpgm"])
    return pad_hazards(resolve_waits(flatten(p)))

def descriptor(name, vgpr, accum, sgpr):
    return f""".amdhsa_kernel {name}
  .amdhsa_next_free_vgpr {vgpr}
  .amdhsa_next_free_sgpr {sgpr}
  .amdhsa_accum_offset {accum}
  .amdhsa_group_segment_fixed_size 0
  .amdhsa_kernarg_size 72
  .amdhsa_user_sgpr_count 2
  .amdhsa_user_sgpr_kernarg_segment_ptr 1
  .amdhsa_system_sgpr_workgroup_id_x 1
.end_amdhsa_kernel
"""

def generate(c):
    prog, log, info = main_kernel(c)
    k1, k2 = NAME + "_kernel", "reduce_kernel"
    if c.inred:
        s = f"""; Fused LayerNorm + 2-D spectral filter + SiLU feed-forward, generated by gen/gen.py.
; @launch grid=(256,1,1) block=(256,1,1) lds=163840
.amdgcn_target "amdgcn-amd-amdhsa--gfx950"
.text
.globl {k1}
.p2align 8
.type {k1},@function
{k1}:
{render(prog)}
.section .rodata,"a"
.p2align 6
{descriptor(k1, 512, 256, 102)}"""
        return s, log, info, prog
    red = reduce_kernel(c)
    s = f"""; Fused LayerNorm + 2-D spectral filter + SiLU feed-forward, generated by gen/gen.py.
; @launch kernel={k1} grid=(256,1,1) block=(256,1,1) lds=163840
; @launch kernel={k2} grid=(576,1,1) block=(256,1,1) lds=0
.amdgcn_target "amdgcn-amd-amdhsa--gfx950"
.text
.globl {k1}
.p2align 8
.type {k1},@function
{k1}:
{render(prog)}
.globl {k2}
.p2align 8
.type {k2},@function
{k2}:
{render(red)}
.section .rodata,"a"
.p2align 6
{descriptor(k1, 512, 256, 102)}.p2align 6
{descriptor(k2, 64, 64, 48)}"""
    return s, log, info, prog

if __name__ == "__main__":
    c = Cfg()
    if "nospec" in sys.argv: c.spectral = False
    if "stamps" in sys.argv: c.stamps = True; c.stamp_at = []
    for a_ in sys.argv:
        if a_.startswith("at="): c.stamp_at = a_[3:].split(",")
    if "cyc" in sys.argv: c.clk = "s_memtime"
    for a_ in sys.argv[2:]:
        if "=" in a_ and not a_.startswith("at="):
            k_, v_ = a_.split("="); assert hasattr(c, k_), k_; setattr(c, k_, int(v_) if v_.lstrip('-').isdigit() else v_)
    s, log, info, prog = generate(c)
    out = sys.argv[1]
    open(out, "w").write(s)
    from collections import Counter
    print("instructions", len(prog), Counter(i.kind for i in prog).most_common())
    print(info["marks"], info["bars"], info["eH"], info["x1"], info["hdone"], info["late"])
    if c.stamps or c.prof: open(out + ".names", "w").write(" ".join(c.names))
    print(len(log), "log lines"); open("gen.log", "w").write("\n".join(log))
```
